```python
import torch

def _softmax(x, axis=-1):
    return torch.softmax(x, dim=axis)
def _gelu(x):
    return torch.nn.functional.gelu(x, approximate="tanh")
def _silu(x):
    return torch.nn.functional.silu(x)
def _sigmoid(x):
    return torch.sigmoid(x)
def _layernorm(x, axis=-1, eps=1e-5):
    m = x.mean(dim=axis, keepdim=True)
    v = x.var(dim=axis, keepdim=True, unbiased=False)
    return (x - m) / torch.sqrt(v + eps)
def _scatter_add(tgt, idx, src, axis=0):
    return tgt.clone().index_add_(axis, idx, src)
def _segment_sum(src, seg, n):
    out = torch.zeros((n,) + src.shape[1:], dtype=src.dtype)
    return out.index_add_(0, seg, src)
def _pad(x, pw):
    flat = tuple(v for pair in reversed(pw) for v in pair)
    return torch.nn.functional.pad(x, flat)

kernel_name = 'concat_heads__gqa_block_cached__sliding_block_cached__decode'

def setup_inputs():

    _w = (lambda a: (lambda t: t.to(torch.bfloat16) if t.is_floating_point() else t)(torch.as_tensor(a)))
    def _A_setup():
        B, Sq, D = 4, 1, 512
        Hq, Hkv, Sk, Dh = 32, 32, 8192, 128
        assert Hq % Hkv == 0, (Hq, Hkv)
        return {
            "x": _w((lambda *s: torch.randn(*s, dtype=torch.bfloat16) * 0.8)(B, Sq, D)),
            "k_cache": _w((lambda *s: torch.randn(*s, dtype=torch.bfloat16) * 1.6)(B, Hkv, Sk, Dh)),
            "v_cache": _w((lambda *s: torch.randn(*s, dtype=torch.bfloat16) * 0.2)(B, Hkv, Sk, Dh)),
            "wq": _w((lambda *s: torch.randn(*s, dtype=torch.bfloat16) * 1.6)(D, Hq * Dh) * (D ** -0.5)),
            "wo": _w((lambda *s: torch.randn(*s, dtype=torch.bfloat16) * 0.2)(Hq * Dh, D) * ((Hq * Dh) ** -0.5)),
        }
    _A_in = _A_setup()

    def _B_setup():
        B, Sq, D = 4, 1, 512
        Hq, Hkv, Sk, Dh = 32, 32, 8192, 128
        assert Hq % Hkv == 0, (Hq, Hkv)
        return {
            "x": _w((lambda *s: torch.randn(*s, dtype=torch.bfloat16) * 0.8)(B, Sq, D)),
            "k_cache": _w((lambda *s: torch.randn(*s, dtype=torch.bfloat16) * 1.6)(B, Hkv, Sk, Dh)),
            "v_cache": _w((lambda *s: torch.randn(*s, dtype=torch.bfloat16) * 0.2)(B, Hkv, Sk, Dh)),
            "wq": _w((lambda *s: torch.randn(*s, dtype=torch.bfloat16) * 1.6)(D, Hq * Dh) * (D ** -0.5)),
            "wo": _w((lambda *s: torch.randn(*s, dtype=torch.bfloat16) * 0.2)(Hq * Dh, D) * ((Hq * Dh) ** -0.5)),
        }
    _B_in = _B_setup()

    return {
        "A_x": _A_in["x"],
        "A_k_cache": _A_in["k_cache"],
        "A_v_cache": _A_in["v_cache"],
        "A_wq": _A_in["wq"],
        "A_wo": _A_in["wo"],
        "B_x": _B_in["x"],
        "B_k_cache": _B_in["k_cache"],
        "B_v_cache": _B_in["v_cache"],
        "B_wq": _B_in["wq"],
        "B_wo": _B_in["wo"],
    }

def reference(A_x, A_k_cache, A_v_cache, A_wq, A_wo, B_x, B_k_cache, B_v_cache, B_wq, B_wo):
    def _A_ref(x, k_cache, v_cache, wq, wo):
        B, Sq, D = x.shape
        Hq, Dh = 32, 128
        Hkv = k_cache.shape[1]
        rep = Hq // Hkv
        q = (lambda x, *d: x.permute(*d))((x @ wq).reshape(B, Sq, Hq, Dh), 0, 2, 1, 3)
        k = (lambda x, n, axis: torch.repeat_interleave(x, n, dim=axis))(k_cache, rep, axis=1)
        v = (lambda x, n, axis: torch.repeat_interleave(x, n, dim=axis))(v_cache, rep, axis=1)
        scores = torch.einsum("bhqd,bhkd->bhqk", q, k) * (Dh ** -0.5)
        p = _softmax(scores, axis=-1)
        o = torch.einsum("bhqk,bhkd->bhqd", p, v)
        return (lambda x, *d: x.permute(*d))(o, 0, 2, 1, 3).reshape(B, Sq, Hq * Dh) @ wo

    def _B_ref(x, k_cache, v_cache, wq, wo):
        B, Sq, D = x.shape
        Hq, Dh = 32, 128
        Hkv, Sk = k_cache.shape[1], k_cache.shape[2]
        W = min(4096, max(256, Sk // 4))
        rep = Hq // Hkv
        q = (lambda x, *d: x.permute(*d))((x @ wq).reshape(B, Sq, Hq, Dh), 0, 2, 1, 3)
        k = (lambda x, n, axis: torch.repeat_interleave(x, n, dim=axis))(k_cache[:, :, Sk - W:, :], rep, axis=1)
        v = (lambda x, n, axis: torch.repeat_interleave(x, n, dim=axis))(v_cache[:, :, Sk - W:, :], rep, axis=1)
        scores = torch.einsum("bhqd,bhkd->bhqk", q, k) * (Dh ** -0.5)
        p = _softmax(scores, axis=-1)
        o = torch.einsum("bhqk,bhkd->bhqd", p, v)
        return (lambda x, *d: x.permute(*d))(o, 0, 2, 1, 3).reshape(B, Sq, Hq * Dh) @ wo

    a = _A_ref(A_x, A_k_cache, A_v_cache, A_wq, A_wo)
    b = _B_ref(B_x, B_k_cache, B_v_cache, B_wq, B_wo)
    return torch.concatenate([a, b], axis=-1)
```

```python
import sys
from build import build, KN
def gen(lbits, wbits, gbits, sbits, S=2, pol="nt", mode="seq", bar=1, stag=0, lg=(8,9), bufs="ab", sing=0):
    grid = 256
    U = 1 << len(lbits); NW = 1 << len(wbits)
    M = lambda x: (1 << x) if isinstance(x, int) else sum(1 << b for b in x)
    rows = [M(x) for x in list(lg) + lbits + wbits + gbits + sbits]
    assert len(rows) == 20
    basis = []
    for r in rows:
        for b in basis: r = min(r, r ^ b)
        assert r or sing, "singular"
        basis.append(r)
    assert all(r < (1 << 28) and r % 256 == 0 for r in rows)
    assert len(gbits) == 8
    a = []; e = a.append
    e(f"; @launch grid=({grid},1,1) block=({NW*64},1,1) lds=0")
    e('.amdgcn_target "amdgcn-amd-amdhsa--gfx950"\n.text')
    e(f".globl {KN}\n.p2align 8\n.type {KN},@function\n{KN}:")
    e(f"s_cmp_ge_u32 s2, {grid}\ns_cbranch_scc1 L_end")
    e("s_memrealtime s[40:41]")
    bo = dict(a=8, b=16, c=48, d=56)
    e(f"s_load_dwordx2 s[4:5], s[0:1], {bo[bufs[0]]}\ns_load_dwordx2 s[6:7], s[0:1], {bo[bufs[1]]}")
    e("s_load_dwordx2 s[12:13], s[0:1], 96")
    e("v_lshrrev_b32 v1, 6, v0\ns_nop 0\nv_readfirstlane_b32 s3, v1")
    e("v_and_b32 v2, 15, v0\nv_lshlrev_b32 v2, 4, v2")
    for i, b in enumerate(lg): e(f"v_bfe_u32 v5, v0, {4+i}, 1\ns_mov_b32 s35, {M(b)}\nv_mul_lo_u32 v5, v5, s35\nv_xor_b32 v2, v2, v5")
    e("s_waitcnt lgkmcnt(0)")
    e("s_mov_b32 s16, s4\ns_mov_b32 s17, s5\ns_mov_b32 s18, 0x10000000\ns_mov_b32 s19, 0x20000")
    e("s_mov_b32 s20, s6\ns_mov_b32 s21, s7\ns_mov_b32 s22, 0x10000000\ns_mov_b32 s23, 0x20000")
    e("v_writelane_b32 v3, s40, 0\nv_writelane_b32 v4, s41, 0")
    e("s_mov_b32 s34, 0")
    for i, b in enumerate(wbits): e(f"s_bfe_u32 s35, s3, {i | (1<<16)}\ns_mul_i32 s35, s35, {M(b)}\ns_xor_b32 s34, s34, s35")
    for i, b in enumerate(gbits): e(f"s_bfe_u32 s35, s2, {i | (1<<16)}\ns_mul_i32 s35, s35, {M(b)}\ns_xor_b32 s34, s34, s35")
    ns = 1 << len(sbits)
    loff = []
    for i in range(U):
        v = 0
        for k, b in enumerate(lbits):
            if (i >> k) & 1: v ^= M(b)
        loff.append(v)
    nb = 2 if mode == "kv" else 1
    n = ns if mode == "kv" else 2 * ns
    D = nb * U * S; base = 8
    assert D <= 60
    e("s_mov_b32 s37, 0")
    if stag: e(f"s_mul_i32 s54, s2, 0x9E3779B1\ns_lshr_b32 s55, s54, 13\ns_xor_b32 s54, s54, s55\ns_mul_i32 s54, s54, 0x85EBCA6B\ns_lshr_b32 s54, s54, 19\ns_and_b32 s54, s54, {ns-1}")
    else: e("s_mov_b32 s54, 0")
    def ld(st, wait):
        e("s_mov_b32 s36, s34\ns_xor_b32 s56, s37, s54")
        for k, b in enumerate(sbits):
            e(f"s_bfe_u32 s55, s56, {k | (1<<16)}\ns_mul_i32 s55, s55, {M(b)}\ns_xor_b32 s36, s36, s55")
        for which in range(nb):
            if wait: e(f"s_waitcnt vmcnt({D - U})")
            if wait and bar and which == 0: e("s_barrier")
            for ii in range(U):
                r = base + (st * nb * U + which * U + ii) * 4
                srd = 16 if which == 0 else 20
                e(f"s_xor_b32 s38, s36, {loff[ii]}")
                e(f"v_xor_b32 v5, s38, v2\nbuffer_load_dwordx4 v[{r}:{r+3}], v5, s[{srd}:{srd+3}], 0 offen {pol}")
        e(f"s_add_u32 s37, s37, 1\ns_and_b32 s37, s37, {ns-1}")
        if mode == "seq":
            e("s_cselect_b32 s16, s16, s6\ns_cselect_b32 s17, s17, s7")
    P = 16
    assert n % S == 0 and (n // P) % S == 0, (n, S, P)
    for st in range(S): ld(st, False)
    e("s_mov_b32 s52, 1")
    e(f"s_mov_b32 s39, {n//P//S}")
    e(f"s_mov_b32 s53, {n//S - 1}")
    e("L_A:")
    for st in range(S): ld(st, True)
    e("s_sub_u32 s39, s39, 1\ns_cmp_lg_u32 s39, 0\ns_cbranch_scc1 L_ns")
    e(f"s_memrealtime s[42:43]\ns_mov_b32 s39, {n//P//S}\ns_mov_b32 m0, s52\ns_waitcnt lgkmcnt(0)")
    e("v_writelane_b32 v3, s42, m0\nv_writelane_b32 v4, s43, m0\ns_add_u32 s52, s52, 1")
    e("L_ns:")
    e("s_sub_u32 s53, s53, 1\ns_cmp_lg_u32 s53, 0\ns_cbranch_scc1 L_A")
    e("s_waitcnt vmcnt(0)\ns_barrier\ns_memrealtime s[42:43]")
    e("s_cmp_lg_u32 s3, 0\ns_cbranch_scc1 L_end")
    e("s_add_u32 s12, s12, 0x20000000\ns_addc_u32 s13, s13, 0")
    e("s_getreg_b32 s44, hwreg(HW_REG_XCC_ID)")
    e("s_waitcnt lgkmcnt(0)")
    e(f"v_writelane_b32 v3, s42, {P}\nv_writelane_b32 v4, s43, {P}")
    e("s_lshl_b32 s46, s2, 6\nv_mov_b32 v1, s46")
    e("v_mov_b32 v8, s40\nv_mov_b32 v9, s41\nv_mov_b32 v10, s42\nv_mov_b32 v11, s43\nv_mov_b32 v12, s44")
    e("s_lshl_b32 s46, s2, 8\ns_add_u32 s46, s46, 0x800000\nv_lshlrev_b32 v5, 3, v0\nv_add_u32 v5, s46, v5")
    e("v_mov_b32 v6, v3\nv_mov_b32 v7, v4")
    e("s_mov_b32 exec_lo, -1\ns_mov_b32 exec_hi, 0")
    e("global_store_dwordx2 v5, v[6:7], s[12:13]")
    e("s_mov_b64 exec, 1")
    e("global_store_dwordx4 v1, v[8:11], s[12:13]")
    e("global_store_dword v1, v12, s[12:13] offset:56")
    e("s_waitcnt vmcnt(0)")
    e("L_end:\ns_endpgm")
    nv = max(base + D * 4, 16); acc = (nv + 3) // 4 * 4
    e(f""".section .rodata,"a"
.p2align 6
.amdhsa_kernel {KN}
  .amdhsa_next_free_vgpr {nv}
  .amdhsa_next_free_sgpr 64
  .amdhsa_accum_offset {acc}
  .amdhsa_group_segment_fixed_size 0
  .amdhsa_kernarg_size 104
  .amdhsa_user_sgpr_count 2
  .amdhsa_user_sgpr_kernarg_segment_ptr 1
  .amdhsa_system_sgpr_workgroup_id_x 1
.end_amdhsa_kernel""")
    return "\n".join(a) + "\n"
names = []
def mk(l, w, g, s, **kw):
    c = "0123456789abcdefghijklmnopqrstuv"
    f = lambda x: "".join(c[b] if isinstance(b, int) else c[b[0]] + "".join(c[y].upper() for y in b[1:]) for b in x)
    n = f"b_l{f(l)}_w{f(w)}_g{f(g)}_s{f(s)}" + "".join(f"_{k}{f(v) if k == 'lg' else v}" for k, v in kw.items())
    build(n, gen(l, w, g, s, **kw), check=False); names.append(n)
def fin():
    print(" ".join(names)); open("names.txt", "w").write(" ".join(names))
if __name__ == "__main__":
    for s0 in range(15, 24):
        sb = list(range(s0, s0 + 5))
        gb = [b for b in range(15, 28) if b not in sb]
        mk([10, 11], [12, 13, 14], gb, sb, S=4)
        mk([10, 11], [12, 13, 14], gb[5:] + gb[:5], sb, S=4)
    fin()
```

```python
import sys, struct
from build import build, KN
REF = "concat_heads__gqa_block_cached__sliding_block_cached__decode.s.ref"
C_SCALE = 0.08838834764831845 * 1.4426950408889634
def f32(x): return "0x%08x" % struct.unpack("<I", struct.pack("<f", x))[0]

def gen(hi=5, lo=3, cut=3, burst=1, pol="nt", wqpol="nt", wopol="nt", stamps=0, final=0, abl="", endhi=1, shi=5,
        pst=0, hst=0, probe=None, x13=1, pre0=8, peel=1, warm=0, phi=12, prepol="", psl=0, lateP=1, warm0=2, trace=0, qsl=0, preread=0, qmode="s", nb=0, bflag=1, mlearly=1, rmap=1, psl2=0, dbgst=0, kp=40, ki=2, off=15, x14=0, imax=64, ep=0, clk=0, foreign=0, fwhich="kv", lv=(3,4,6,9,12), ja=4, jb=6, jr=7, jmax=16, pcap=8, helpat=0, hstride=6, hlp=1, pd=1, pt=7, hcap=16, lastfb=39, pwg=None, xpos=1, lin=1, init2=1, mlfull=1, hprio=0, pprio=None, sprio=1, pb16=1, defer=0, imask=0x55ff, pkj=4, hml=1, hpat=0, opol="nt", sched="0001010101010101010101010101010101011111", dly=None, perm=None, eg=None, boost=None, hx=1, tb=((10,13),(11,),(14,)), jx=(10,11), jn=1, jnr=1, jnb=8, jnd=3, xf=1, pmin=0, sb1=0, sm=1, fg=8, jd=3, pk2=(7,34), wpos=0, dummy=0, dk_="a", dsh=0, rw=2, swp=0, swq=0, batchB=0, rowpad=128, dpoll=0, mbs=0, pb=0, pbr=(5,40), pbe=7, pbk=0, qhalf=0, tramp=0, rr=0, rre=-1, rrk=0, rrd=1, wonat=0, rew=0):
    NW = 4
    PLEN = 1024 if pb16 else 2048
    ROW = PLEN + rowpad
    hs = 1 if pb16 else 0
    WS_QC, WS_FB, WS_QX, WS_P = 0, 0x2000, 0x40000, 0x100000
    L_QP = 0
    L_OB, L_LS, L_MX, L_DUP = 0, 2048, 2064, 2304
    L_QT, L_FLAG = 8192, 8704
    L_SC = 9216
    L_WO = 25600
    LDS = L_WO + 131072 + 1024
    a = []; e = a.append
    vT, vKV, vL, vMx = 0, 1, 2, 3
    vQ, vM, vO = 4, 8, 12
    vNmc, vZ, vLane, vT2 = 16, 17, 18, 19
    vS, vB = 20, 28
    vRm, vSA, vP0, vP1 = 44, 45, 46, 47
    vR, vW = 48, 112
    vA8, vA64, vSt, vOw, vRow, vWa, vML = 240, 241, 242, 243, 244, 245, 246
    vN0, vN1, vIx, vWb = 248, 249, 250, 251
    NV = 256 if trace else 252
    vTr, sTr, sTi = 252, 82, 86
    def tr_issue():
        if trace: e(f"s_memrealtime s[{sTr}:{sTr+1}]")
    def tr_put():
        if trace: e(f"s_mov_b32 m0, s{sTi}\ns_bitcmp1_b32 s{sTi}, 6\ns_cbranch_scc1 1f\nv_writelane_b32 v{vTr}, s{sTr}, m0\ns_branch 2f\n1:\nv_writelane_b32 v{vTr+1}, s{sTr}, m0\n2:\ns_add_u32 s{sTi}, s{sTi}, 1")
    def tr():
        if trace: tr_issue(); e("s_waitcnt lgkmcnt(0)"); tr_put()
    def vr(b, n=4): return f"v[{b}:{b+n-1}]"
    ring = lambda i: vR + 4 * i
    Wa = lambda i: vW + 4 * i
    Wb = lambda i: vW + 64 + 4 * i
    sD, sW, sWS = 32, 36, 40
    sWave, sJ, sH, sB, sHalf = 3, 44, 45, 46, 47
    sOff, sOffA, sOffB, sIt, sRed, sPh = 48, 49, 50, 51, 52, 53
    sCs, sRow, sT0, sT1, sT2, sEnd = 54, 55, 56, 57, 58, 59
    sNx, sNOff, sOut = 60, 62, 63
    sLd, sRed2 = 80, 81
    sMk, sInt = 78, 79
    sPk, sPkB, sRq, sReg, sRk = 49, 50, 54, 81, 85
    sSt = 66
    D1, PB, D2, EW = 4, 13, 18, 27
    hdr = open(REF).read().split("; Override launch")[0] if final else ""
    e(hdr + f"; @launch grid=(256,1,1) block=({(NW+1)*64},1,1) lds={LDS}")
    e('.amdgcn_target "amdgcn-amd-amdhsa--gfx950"\n.text')
    e(f".globl {KN}\n.p2align 8\n.type {KN},@function\n{KN}:")
    def hstamp(i):
        if hst: e(f"s_memrealtime s[{sSt+2*i}:{sSt+2*i+1}]")
    def stamp(i):
        if stamps: e(f"s_memrealtime s[{sSt+2*i}:{sSt+2*i+1}]")
    e("s_load_dwordx16 s[4:19], s[0:1], 0")
    e("s_load_dwordx8 s[20:27], s[0:1], 64")
    e("s_load_dwordx2 s[28:29], s[0:1], 96")
    stamp(0)
    e("s_cmpk_ge_u32 s2, 256\ns_cbranch_scc1 L_end")
    if perm: e(f"s_mul_i32 s2, s2, {perm[0]}\ns_add_u32 s2, s2, {perm[1]}\ns_lshr_b32 s3, s2, 3\ns_and_b32 s3, s3, 31\ns_lshl_b32 s2, s2, 5\ns_and_b32 s2, s2, 0xe0\ns_or_b32 s2, s2, s3")
    if dly:
        e(f"s_and_b32 s3, s2, {dly[0]}\ns_cmp_lg_u32 s3, {dly[1]}\ns_cbranch_scc1 L_nodly\ns_memrealtime s[90:91]\ns_waitcnt lgkmcnt(0)")
        e(f"L_dly:\ns_memrealtime s[92:93]\ns_waitcnt lgkmcnt(0)\ns_sub_u32 s3, s92, s90\ns_cmp_lt_u32 s3, {dly[2]*100}\ns_cbranch_scc1 L_dly\nL_nodly:")
    if wpos == 0:
        e(f"s_getpc_b64 s[30:31]\nL_pc:\nv_lshlrev_b32 v{vML+1}, 7, v0\nv_min_u32 v{vML+1}, L_end-L_pc, v{vML+1}\nglobal_load_dword v{vML+1}, v{vML+1}, s[30:31]")
    e(f"v_lshrrev_b32 v{vT2}, 4, v0\nv_and_b32 v{vS}, 15, v0")
    e(f"v_cmp_le_u32 vcc, 16, v{vT2}\nv_lshlrev_b32 v{vS}, 4, v{vS}")
    e(f"s_and_b32 s{sH}, s2, 7\ns_lshr_b32 s{sT0}, s2, 6\ns_lshl3_add_u32 s{sH}, s{sT0}, s{sH}")
    e(f"s_lshl_b32 s{sW+2}, 1, 22\ns_mov_b32 s{sW+3}, 0x20000")
    e("s_cbranch_vccnz " + ("L_hop1" if tramp else "L_helper"))
    def ids():
        e(f"v_lshrrev_b32 v{vZ}, 6, v0\nv_and_b32 v{vLane}, 63, v0\nv_readfirstlane_b32 s{sWave}, v{vZ}")
        e(f"s_bfe_u32 s{sJ}, s2, 0x30003\ns_lshr_b32 s{sB}, s{sJ}, 1\ns_and_b32 s{sHalf}, s{sJ}, 1")
        e(f"s_mov_b32 s{sD+2}, 0x10000000\ns_mov_b32 s{sD+3}, 0x20000\ns_mov_b32 s{sWS+2}, 0x400000\ns_mov_b32 s{sWS+3}, 0x20000")
        e(f"v_mov_b32 v{vZ}, 0")
        e(f"s_lshl_b32 s{sRow}, s{sB}, 5\ns_add_u32 s{sRow}, s{sRow}, s{sH}\ns_lshl1_add_u32 s{sReg}, s{sRow}, s{sHalf}")
        e(f"s_mul_i32 s{sRow}, s{sReg}, {ROW}\ns_add_u32 s{sRow}, s{sRow}, {WS_P}")
    WS_P2 = 0x200000
    sP = 94
    def swz(v, t):
        e(f"v_lshrrev_b32 v{t}, 2, v{v}\nv_and_b32 v{t}, 0x7f80, v{t}\nv_bfe_i32 v{vNmc}, v{v}, 7, 1\nv_and_b32 v{vNmc}, 0x8180, v{vNmc}\nv_xor_b32 v{t}, v{t}, v{vNmc}")
        e(f"v_bfe_i32 v{vNmc}, v{v}, 8, 1\nv_and_b32 v{vNmc}, 0x10200, v{vNmc}\nv_xor_b32 v{t}, v{t}, v{vNmc}\nv_and_b32 v{v}, 0xfffe007f, v{v}\nv_or_b32 v{v}, v{v}, v{t}")
    def consts(wv):
        e(f"v_and_b32 v{vT}, 1, v{vLane}\nv_lshlrev_b32 v{vT}, 4, v{vT}\nv_mov_b32 v{vT2}, 0xffff\nv_lshlrev_b32 v{vT}, v{vT}, v{vT2}")
        e(f"v_bfe_u32 v{vT2}, v{vLane}, 1, 2")
        for j in range(4):
            e(f"v_cmp_eq_u32 vcc, {j}, v{vT2}\ns_nop 1\nv_cndmask_b32 v{vM+j}, 0, v{vT}, vcc")
    def consts2(wv):
        e(f"v_lshlrev_b32 v{vA8}, 3, v{vLane}")
        e(f"v_lshrrev_b32 v{vT}, 3, v{vLane}\nv_lshlrev_b32 v{vA64}, 6, v{vT}")
        if sm:
            e(f"v_and_b32 v{vT}, 1, v{vT}\nv_lshrrev_b32 v{vT2}, 5, v{vLane}\nv_lshl_add_u32 v{vT}, v{vT2}, 1, v{vT}\nv_mul_u32_u24 v{vWa}, {16384+128}, v{vT}")
            e(f"v_bfe_u32 v{vT}, v{vLane}, 4, 1\nv_lshl_add_u32 v{vWa}, v{vT}, 10, v{vWa}")
            e(f"v_bfe_i32 v{vN1}, v{vLane}, 2, 1\nv_not_b32 v{vN0}, v{vN1}\nv_and_b32 v{vIx}, 3, v{vLane}\nv_mul_u32_u24 v{vIx}, 0x5555, v{vIx}")
            e(f"v_and_b32 v{vT2}, 7, v{vLane}\nv_lshl_add_u32 v{vWa}, v{vT2}, 4, v{vWa}")
        else:
            e(f"v_mul_u32_u24 v{vWa}, {16384+128}, v{vT}\nv_and_b32 v{vT2}, 7, v{vLane}\nv_lshl_add_u32 v{vWa}, v{vT2}, 4, v{vWa}")
        if lin:
            e(f"v_lshlrev_b32 v{vSt}, {4-hs}, v{vT2}\nv_lshrrev_b32 v{vT}, 4, v{vLane}\nv_lshl_add_u32 v{vSt}, v{vT}, {7-hs}, v{vSt}\nv_and_b32 v{vT2}, 16, v{vLane}")
        else:
            e(f"v_lshlrev_b32 v{vSt}, 5, v{vT2}\nv_and_b32 v{vT2}, 16, v{vLane}\nv_add_u32 v{vSt}, v{vSt}, v{vT2}")
            e(f"v_lshrrev_b32 v{vT}, 5, v{vLane}\nv_lshl_add_u32 v{vSt}, v{vT}, 8, v{vSt}")
        if wv is not None:
            e(f"s_lshl_b32 s{sT0}, s{wv}, 8\nv_add_u32 v{vWa}, s{sT0}, v{vWa}")
            e(f"s_lshl_b32 s{sT0}, s{wv}, {9-hs}\nv_add_u32 v{vSt}, s{sT0}, v{vSt}\ns_lshl_b32 s{sT0}, s{wv}, 9")
            e(f"v_and_b32 v{vT}, 15, v{vLane}\nv_lshlrev_b32 v{vT}, 5, v{vT}\nv_add3_u32 v{vOw}, v{vT}, v{vT2}, s{sT0}")
        if sm: e(f"v_add_u32 v{vWb}, {4*(16384+128)}, v{vWa}")
        if swp:
            assert pb16 and lin and not defer
            e(f"s_lshl_b32 s{sT0}, s{sReg}, 10\nv_add_u32 v{vSt}, s{sT0}, v{vSt}\ns_mov_b32 s{sP}, {WS_P2 + (0 if wv is not None else 0x40000)}")
            swz(vSt, vT)
    e(f"v_lshl_add_u32 v{vS}, v{vT2}, 16, v{vS}")
    e(f"s_and_b32 s{sT0}, s2, 0x18\ns_lshl_b32 s{sT1}, s{sT0}, 9\ns_add_u32 s{sT1}, s{sT1}, s{sH}\ns_lshl_b32 s{sT1}, s{sT1}, 8")
    if wpos == 2:
        e(f"s_getpc_b64 s[30:31]\nL_pc:\nv_lshlrev_b32 v{vML+1}, 7, v0\nv_min_u32 v{vML+1}, L_end-L_pc, v{vML+1}\nglobal_load_dword v{vML+1}, v{vML+1}, s[30:31]")
    e("s_bitcmp0_b32 s2, 5")
    if pst == 4: stamp(1)
    e("s_waitcnt lgkmcnt(0)")
    if pst == 4: stamp(2)
    e(f"s_cselect_b32 s{sW}, s10, s20\ns_cselect_b32 s{sW+1}, s11, s21")
    if "q" in abl:
        e(f"v_and_b32 v{vS}, 63, v0\nv_lshlrev_b32 v{vS}, 4, v{vS}\nv_bfe_u32 v{vS+2}, v0, 3, 1\ns_bfe_u32 s{sT1}, s2, 0x10003\nv_xor_b32 v{vS+2}, s{sT1}, v{vS+2}\nv_mul_u32_u24 v{vS+2}, 0x8100, v{vS+2}\nv_xor_b32 v{vS}, v{vS}, v{vS+2}")
        e(f"v_lshrrev_b32 v{vS+2}, 6, v0\nv_lshl_add_u32 v{vS}, v{vS+2}, 12, v{vS}\ns_bfe_u32 s{sT1}, s2, 0x10004\ns_lshl1_add_u32 s{sT1}, s{sH}, s{sT1}\ns_lshl_b32 s{sEnd}, s{sT1}, 16\ns_bitcmp0_b32 s2, 5")
    if "Q" in abl: e(f"s_cselect_b32 s{sIt}, 0, 0x400000\ns_add_u32 s{sW}, s6, s{sIt}\ns_addc_u32 s{sW+1}, s7, 0\ns_bitcmp0_b32 s2, 5")
    ops = []
    def wq(t):
        if "q" in abl:
            e(f"s_mov_b32 s{sT1}, s{sEnd}" if t == 0 else f"s_add_u32 s{sT1}, s{sEnd}, {((t & 3) << 10) | ((t >> 2) << 14)}")
        e(f"buffer_load_dwordx4 {vr(ring(8+t))}, v{vS}, s[{sW}:{sW+3}], s{sT1} offen {wqpol}"); ops.append(("w", t))
    wq(0)
    if pst == 5: stamp(1); e("s_waitcnt vmcnt(0)"); stamp(2)
    e(f"s_cselect_b32 s30, s4, s14\ns_cselect_b32 s31, s5, s15")
    e(f"s_cselect_b32 s{sNx}, s12, s22\ns_cselect_b32 s{sNx+1}, s13, s23")
    for t in range(1, 8):
        e(f"s_addk_i32 s{sT1}, 8192"); wq(t)
        if t == xpos:
            e(f"s_lshl_b32 s{sT0}, s{sT0}, 5\nv_lshl_add_u32 v{vS+1}, v{vT2}, 4, s{sT0}\nv_bfe_u32 v{vT2}, v0, 3, 1\nv_lshl_add_u32 v{vS+1}, v{vT2}, 10, v{vS+1}")
            e(f"global_load_dwordx4 {vr(vQ)}, v{vS+1}, s[30:31]"); ops.append(("x", 0))
            e(f"global_load_dwordx4 {vr(vO)}, v{vS+1}, s[30:31] offset:2048"); ops.append(("x", 1))
    if pst == 2: stamp(1)
    if warm0 == 2 and wpos == 1:
        e(f"s_getpc_b64 s[30:31]\nL_pc:\nv_lshlrev_b32 v{vML+1}, 7, v0\nv_min_u32 v{vML+1}, L_end-L_pc, v{vML+1}\nglobal_load_dword v{vML+1}, v{vML+1}, s[30:31]"); ops.append(("c", 0))
    if tramp: e("s_branch L_ov1\nL_hop1:\ns_branch " + ("L_hop2" if tramp > 1 else "L_helper") + "\nL_ov1:")
    if sprio: e(f"s_setprio {sprio}")
    ids()
    e(f"s_mov_b32 s{sW}, s{sNx}\ns_mov_b32 s{sW+1}, s{sNx+1}")
    if "O" in abl: e(f"s_bitcmp0_b32 s2, 5\ns_cselect_b32 s{sIt}, 0, 0x400000\ns_add_u32 s{sW}, s8, s{sIt}\ns_addc_u32 s{sW+1}, s9, 0")
    assert hml
    vKV1 = vML
    e(f"v_lshlrev_b32 v{vKV}, 4, v{vLane}\nv_bfe_u32 v{vT2}, v{vLane}, 3, 1")
    if hx: e(f"v_xor_b32 v{vT2}, s{sHalf}, v{vT2}")
    e(f"v_mul_u32_u24 v{vT2}, 0x8100, v{vT2}\nv_xor_b32 v{vKV}, v{vKV}, v{vT2}\nv_xor_b32 v{vKV1}, 0x8100, v{vKV}")
    e(f"s_lshl_b32 s{sT2}, s{sWave}, 12")
    for k, bit in enumerate(jx): e(f"s_bfe_u32 s{sT0}, s{sB}, {k | 0x10000}\ns_lshl_b32 s{sT0}, s{sT0}, {bit}\ns_xor_b32 s{sT2}, s{sT2}, s{sT0}")
    assert hx
    e(f"s_and_b32 s{sT0}, s{sB}, 1\ns_lshl1_add_u32 s{sT0}, s{sH}, s{sT0}\ns_lshl_b32 s{sT0}, s{sT0}, 16\ns_add_u32 s{sOff}, s{sT0}, s{sT2}")
    e(f"s_lshl_b32 s{sOffA}, s{sReg}, 20\ns_add_u32 s{sOffA}, s{sOffA}, s{sT2}")
    e(f"s_mul_i32 s{sT0}, s{sHalf}, {(1<<20) - (1<<18)}\ns_sub_u32 s{sOffB}, s{sOffA}, s{sT0}\ns_add_u32 s{sOffB}, s{sOffB}, {6144*256}")
    if foreign:
        e(f"s_lshr_b32 s{sEnd}, s{sOffA}, 21\ns_cmp_lt_u32 s{sEnd}, {foreign}")
        if "k" in fwhich: e("s_cselect_b32 s6, s16, s6\ns_cselect_b32 s7, s17, s7")
        if "v" in fwhich: e("s_cselect_b32 s8, s18, s8\ns_cselect_b32 s9, s19, s9")
        if "K" in fwhich: e("s_cselect_b32 s16, s6, s16\ns_cselect_b32 s17, s7, s17")
        if "V" in fwhich: e("s_cselect_b32 s18, s8, s18\ns_cselect_b32 s19, s9, s19")
    if trace: e(f"s_mov_b32 s{sTi}, 0\nv_mov_b32 v{vTr}, 0\nv_mov_b32 v{vTr+1}, 0"); tr()
    def xc(i):
        c = 0
        for k in range(3):
            if (i >> k) & 1:
                for b in tb[k]: c ^= 1 << b
        return c
    def ld(dst, i, srd=sD, p=pol, pre=None):
        c = xc(i)
        if pre and not xf: pre()
        if c: e(f"s_xor_b32 s{sT1}, s{sOff}, {c}")
        if pre and xf: pre()
        e(f"buffer_load_dwordx4 {vr(dst)}, v{vKV1 if i >= 8 else vKV}, s[{srd}:{srd+3}], s{sT1 if c else sOff} offen {p}")
        if i == 15: e(f"s_add_u32 s{sOff}, s{sOff}, 0x10000")
    kslot = lambda n: (Wa, ring, Wb, Wa)[n >> 4](n & 15)
    def sld(n):
        if n % 8 == 0: tr()
        if n < 8:
            if wonat:
                if n == 0: e(f"v_lshlrev_b32 v{vP0}, 4, v{vLane}\ns_and_b32 s{sT0}, s{sJ}, 3\ns_lshl2_add_u32 s{sT0}, s{sH}, s{sT0}\ns_lshl_b32 s{sT0}, s{sT0}, 15\ns_lshl_b32 s{sOff}, s{sWave}, {13 if wonat == 1 else 12}\ns_add_u32 s{sOff}, s{sOff}, s{sT0}")
                if n == 4: e(f"s_add_u32 s{sOff}, s{sOff}, {4096 if wonat == 1 else 16384}")
                e(f"buffer_load_dwordx4 {vr(vB + 4 * (n & 3))}, v{vP0}, s[{sW}:{sW+3}], s{sOff} offen offset:{1024*(n&3)} {prepol}")
            else: ld(vB + 4 * (n & 3), n, sW, prepol)
            if n == 7: e(f"s_mov_b32 s{sOff}, s{sOffB}")
        else: ld(kslot(n-8), (n-8) & 15)
    n = 0
    e(f"s_mov_b32 s{sD}, s16\ns_mov_b32 s{sD+1}, s17")
    while n < pre0:
        if n == 2 and tramp > 1: e("s_branch L_ov2\nL_hop2:\ns_branch L_helper\nL_ov2:")
        sld(n); n += 1
    e(f"s_mov_b32 s{sWS}, s28\ns_mov_b32 s{sWS+1}, s29")
    consts(sWave)
    e(f"s_mov_b32 s{sCs}, {f32(C_SCALE)}")
    e(f"s_mov_b32 s{sT0}, 0x01000100\ns_mov_b32 s{sT2}, 0x03020302")
    after = lambda op: len(ops) - 1 - ops.index(op)
    e(f"s_waitcnt vmcnt({after(('x', 1)) + n})")
    for j in range(8): e(f"v_mov_b32 v{vS+j}, 0")
    for t in range(8):
        for u in range(2):
            src = (vQ, vO)[u] + (t >> 1)
            e(f"v_perm_b32 v{vT}, v{src}, v{src}, s{sT0 if (t&1)==0 else sT2}")
            for j in range(4): e(f"v_and_b32 v{Wb(2*t+u)+j}, v{vT}, v{vM+j}")
    nlab = [0]
    LV = lv or (lo, hi)
    def thr(bit, n=None):
        if n is not None: e(f"s_waitcnt vmcnt({n})"); return
        nlab[0] += 1
        if LV[-1] < 12: e(f"s_waitcnt vmcnt({LV[-1]})")
        for k in range(len(LV) - 2, -1, -1):
            if len(LV) == 5 and k == 1:
                e(f"s_bitcmp1_b32 s{sMk}, {bit + 8}\ns_cbranch_scc1 L_t{nlab[0]}\ns_bitcmp1_b32 s{sMk}, {bit}\ns_cbranch_scc1 L_u{nlab[0]}\ns_waitcnt vmcnt({LV[0]})\nL_u{nlab[0]}:\ns_waitcnt vmcnt({LV[1]})")
                break
            e(f"s_bitcmp1_b32 s{sMk}, {bit + 8*k}\ns_cbranch_scc1 L_t{nlab[0]}\ns_waitcnt vmcnt({LV[k]})")
        e(f"L_t{nlab[0]}:")
    def pair(r, free=False):
        if burst == 2:
            thr(r >> 1, phi if free else None)
            ld(ring(r), r); ld(ring(r+1), r+1)
        else:
            for k in range(2):
                ld(ring(r+k), r+k, pre=lambda: thr((r + k) & 7, phi if free else None))
    def qm(t):
        for u in range(2):
            e(f"v_mfma_f32_16x16x32_bf16 {vr(vS+4*u)}, {vr(Wb(2*t+u))}, {vr(ring(8+t))}, {vr(vS+4*u)}")
    for t in range(8):
        while shi > after(("w", t)) + n - 1:
            e(f"s_waitcnt vmcnt({shi})"); sld(n); sld(n+1); n += 2
        e(f"s_waitcnt vmcnt({after(('w', t)) + n})"); qm(t)
    e(f"v_and_b32 v{vT}, 15, v{vLane}\nv_lshlrev_b32 v{vT}, 5, v{vT}\nv_and_b32 v{vT2}, 16, v{vLane}\nv_add_u32 v{vT}, v{vT}, v{vT2}")
    e(f"v_lshrrev_b32 v{vT2}, 5, v{vLane}\nv_lshl_add_u32 v{vT}, v{vT2}, 9, v{vT}")
    e(f"s_lshl_b32 s{sT0}, s{sWave}, 11\nv_add_u32 v{vT}, s{sT0}, v{vT}\ns_nop 1")
    e(f"ds_write_b128 v{vT}, {vr(vS)} offset:{L_QP}\nds_write_b128 v{vT}, {vr(vS+4)} offset:{L_QP+1024}")
    e("s_waitcnt lgkmcnt(0)\ns_barrier")
    if pst == 2: stamp(2)
    first = 0
    while n < 56:
        if n == nb: e("s_barrier")
        thr(0, shi); sld(n)
        if sb1: thr(0, shi)
        sld(n+1); n += 2
        first += 1
        if first == 2: consts2(sWave)
        if first == 4:
            e(f"s_lshl_b32 s{sLd}, s{sWave}, 12\nv_and_b32 v{vSA}, 60, v{vLane}\nv_add_u32 v{vSA}, s{sLd}, v{vSA}")
            e(f"v_mov_b32 v{vRm}, 0xff7fffff")
            if rmap == 0:
                e(f"s_mov_b32 s{sOut}, s{sJ}")
                e(f"s_and_b32 s{sT0}, s2, 7\ns_lshl_b32 s{sT0}, s{sT0}, 2\ns_lshr_b32 s{sT2}, s2, 6\ns_add_u32 s{sT0}, s{sT0}, s{sT2}")
            else:
                e(f"s_and_b32 s{sOut}, s2, 7\ns_lshr_b32 s{sT0}, s2, 3")
            e(f"s_and_b32 s{sRed}, s{sOut}, 1\ns_lshl_b32 s{sRed}, s{sRed}, 2\ns_lshr_b32 s{sT2}, s{sOut}, 1\ns_add_u32 s{sRed}, s{sRed}, s{sT2}\ns_mul_i32 s{sRed}, s{sRed}, {ROW*64}\ns_add_u32 s{sRed}, s{sRed}, {WS_P}")
            e(f"s_lshl_b32 s{sT0}, s{sT0}, 2\ns_add_u32 s{sT0}, s{sT0}, s{sWave}")
            if swp:
                e(f"s_lshr_b32 s{sT2}, s{sOut}, 1\ns_lshl_b32 s{sT2}, s{sT2}, 16\ns_lshl3_add_u32 s{sT2}, s{sT0}, s{sT2}\nv_lshl_add_u32 v{vRow}, v{vLane}, 10, s{sT2}")
                swz(vRow, vT)
                e(f"s_and_b32 s{sRed2}, s{sOut}, 1\ns_lshl_b32 s{sRed2}, s{sRed2}, 18\ns_add_u32 s{sRed2}, s{sRed2}, {WS_P2}")
            else: e(f"s_lshl_b32 s{sT2}, s{sT0}, {4-hs}\ns_add_u32 s{sRed2}, s{sRed}, s{sT2}")
            if lin:
                e(f"s_and_b32 s{sT2}, s{sT0}, 7\ns_bfe_u32 s{sEnd}, s{sT0}, 0x10003\ns_lshl1_add_u32 s{sT2}, s{sT2}, s{sEnd}\ns_andn2_b32 s{sT0}, s{sT0}, 15\ns_add_u32 s{sT0}, s{sT0}, s{sT2}")
            e(f"s_lshl_b32 s{sT0}, s{sT0}, 3\ns_lshl_b32 s{sOut}, s{sOut}, 10\ns_add_u32 s{sOut}, s{sOut}, s{sT0}")
            if not swp: e(f"v_mul_u32_u24 v{vRow}, {ROW}, v{vLane}")
    e(f"v_and_b32 v{vT2}, 15, v{vLane}\nv_lshlrev_b32 v{vT2}, 4, v{vT2}")
    if not pst: stamp(1)
    e("s_barrier")
    e(f"ds_read_b128 {vr(vQ)}, v{vT2} offset:{L_QT+256}")
    dpp = lambda ctl, bank=0xf: f"{ctl} row_mask:0xf bank_mask:{hex(bank)}"
    def rdflag(): tr_issue(); e(f"ds_read_b32 v{vT}, v{vZ} offset:{L_FLAG}")
    def useflag(): e(f"s_waitcnt lgkmcnt(0)\nv_readfirstlane_b32 s{sMk}, v{vT}"); tr_put()
    def dots(regs, sb):
        for j in range(4):
            for t in range(4):
                e(f"v_dot2_f32_bf16 v{sb+t}, v{regs[t]+j}, v{vQ+j}, {'0' if j == 0 else 'v%d' % (sb+t)}")
    def kdst(st, g): return vS + 4*g if st == 0 else vB + 4*g
    def red(st, g, off):
        if st == 0: return
        a_, b_ = vS + 4*g, vB + 4*g
        for t in range(4): e(f"v_add_f32_dpp v{a_+t}, v{b_+t}, v{a_+t} {dpp('row_ror:8')}")
        e(f"v_add_f32_dpp v{a_}, v{a_}, v{a_} {dpp('row_half_mirror', 0x5)}")
        e(f"v_add_f32_dpp v{a_}, v{a_+1}, v{a_+1} {dpp('row_half_mirror', 0xa)}")
        e(f"v_add_f32_dpp v{a_+2}, v{a_+2}, v{a_+2} {dpp('row_half_mirror', 0x5)}")
        e(f"v_add_f32_dpp v{a_+2}, v{a_+3}, v{a_+3} {dpp('row_half_mirror', 0xa)}")
        for qp in ("[1,0,3,2]", "[2,3,0,1]"):
            e(f"v_add_f32_dpp v{a_}, v{a_}, v{a_} {dpp('quad_perm:' + qp)}\ns_nop 0")
            e(f"v_add_f32_dpp v{a_+2}, v{a_+2}, v{a_+2} {dpp('quad_perm:' + qp)}")
        e(f"ds_write_b32 v{vSA}, v{a_} offset:{L_SC + off + 128*g}")
        e(f"v_max3_f32 v{vRm}, v{vRm}, v{a_}, v{a_+2}")
        e(f"ds_write_b32 v{vSA}, v{a_+2} offset:{L_SC + off + 128*g + 64}")
    def wavered(x, op, tmp):
        e(f"v_{op}_f32_dpp v{x}, v{x}, v{x} {dpp('row_ror:4')}\ns_nop 1")
        e(f"v_{op}_f32_dpp v{x}, v{x}, v{x} {dpp('row_ror:8')}")
        e(f"v_mov_b32 v{tmp}, v{x}\ns_nop 1")
        e(f"v_permlane16_swap_b32 v{x}, v{tmp}\ns_nop 1")
        e(f"v_{op}_f32 v{x}, v{x}, v{tmp}")
        e(f"v_mov_b32 v{tmp}, v{x}\ns_nop 1")
        e(f"v_permlane32_swap_b32 v{x}, v{tmp}\ns_nop 1")
        e(f"v_{op}_f32 v{x}, v{x}, v{tmp}")
    for i in range(16):
        if i % 4 == 0:
            if i: e("s_barrier")
            rdflag(); useflag()
        if i == 0 and not pst: stamp(2)
        if i == 8: e(f"s_mov_b32 s{sD}, s18\ns_mov_b32 s{sD+1}, s19\ns_mov_b32 s{sOff}, s{sOffB}")
        e("s_waitcnt vmcnt(12)")
        dots([kslot(4*i+t) for t in range(4)], kdst((i >> 1) & 1, i & 1))
        for k in range(2):
            if burst == 1: thr((2*i + k) & 7)
            elif k == 0: thr(i & 7)
            m = 2 * i + k
            ld(Wa(m) if i < 8 else ring(m - 16), m & 15)
        red((i >> 1) & 1, i & 1, 256 * (i >> 2))
    e(f"s_mov_b32 s{sIt}, 4\ns_mov_b32 s{sEnd}, 8\ns_mov_b32 s{sPh}, 0")
    e(f"s_mov_b32 s{sNx}, s6\ns_mov_b32 s{sNx+1}, s7\ns_mov_b32 s{sNOff}, s{sOffA}")
    s0, s1, s2_, s3 = vS, vS+1, vS+2, vS+3
    e("L_k2v:")
    e(f"s_lshl_b32 s{sT0}, s{sWave}, 2\nv_mov_b32 v{vT2}, s{sT0}")
    wavered(vRm, "max", s0)
    e(f"ds_write_b32 v{vT2}, v{vRm} offset:{L_MX}")
    e(f"v_and_b32 v{vSA}, 60, v{vLane}\nv_add_u32 v{vSA}, s{sLd}, v{vSA}\nv_mov_b32 v{vL}, 0")
    for j in range(4): e(f"v_mov_b32 v{vO+j}, 0")
    e(f"s_add_u32 s{sIt}, s{sIt}, 1")
    e("s_waitcnt lgkmcnt(0)\ns_barrier")
    e(f"ds_read_b128 {vr(vS)}, v{vZ} offset:{L_MX}\ns_waitcnt lgkmcnt(0)")
    e(f"v_max3_f32 v{vMx}, v{s0}, v{s1}, v{s2_}\nv_max_f32 v{vMx}, v{vMx}, v{s3}")
    e(f"v_mul_f32 v{vNmc}, s{sCs}, v{vMx}\nv_sub_f32 v{vNmc}, 0, v{vNmc}")
    e("s_branch L_vnobar")
    def soft(p):
        e(f"v_fma_f32 v{p}, v{p}, s{sCs}, v{vNmc}")
        e(f"v_exp_f32 v{p}, v{p}")
    pr = [vS+4, vS+5, vS+6, vS+7]
    def ands(g):
        for t in range(4):
            p = pr[2*g + (t >> 1)]
            for j in range(4):
                if (j >> 1) == (t & 1): e(f"v_and_b32 v{vB+4*t+j}, v{p}, v{vM+j}")
                else: e(f"v_and_b32_dpp v{vB+4*t+j}, v{p}, v{vM+j} {dpp('row_half_mirror')}")
    def rdsc():
        for r in range(4): e(f"ds_read_b32 v{pr[r]}, v{vSA} offset:{L_SC + 64*r}")
    def soft4():
        for r in range(4): soft(pr[r])
        for r in range(4): e(f"v_add_f32 v{vL}, v{vL}, v{pr[r]}")
        for r in range(4): e(f"v_cvt_pk_bf16_f32 v{pr[r]}, v{pr[r]}, v{pr[r]}")
    def flip():
        for r in range(4): e(f"v_mov_b32_dpp v{pr[r]}, v{pr[r]} {dpp('row_ror:8')}")
    def pv(r0, ts):
        for t in ts: e(f"v_mfma_f32_16x16x32_bf16 {vr(vO)}, {vr(vB+4*t)}, {vr(ring(r0+t))}, {vr(vO)}")
    def switch():
        e(f"s_add_u32 s{sIt}, s{sIt}, 1\ns_cmp_eq_u32 s{sIt}, s{sEnd}")
        e(f"s_cselect_b32 s{sD}, s{sNx}, s{sD}\ns_cselect_b32 s{sD+1}, s{sNx+1}, s{sD+1}\ns_cselect_b32 s{sOff}, s{sNOff}, s{sOff}")
    def vstep(st, lab=None, free=False):
        e("s_barrier")
        if lab: e(lab)
        rdflag()
        if st == 0: rdsc()
        else: flip()
        useflag()
        if st == 0: soft4()
        for g in range(2):
            r0 = 8 * st + 4 * g
            ands(g)
            e("s_waitcnt vmcnt(12)")
            pv(r0, range(4))
            pair(r0, free); pair(r0+2, free)
    e(".p2align 6\nL_vloop:")
    e(f"s_sub_u32 s{sT0}, s{sIt}, {EW}\ns_cmp_lt_u32 s{sT0}, 8\ns_cbranch_scc1 L_wpiece\nL_vret:")
    switch()
    vstep(0, "L_vnobar:")
    if peel: e(f"s_cmp_eq_u32 s{sIt}, 39\ns_cbranch_scc1 L_peel")
    vstep(1)
    e(f"v_add_u32 v{vSA}, 256, v{vSA}")
    e(f"s_cmp_lt_u32 s{sIt}, s{sEnd}\ns_cbranch_scc1 L_vloop")
    if peel:
        e("s_branch L_v2k\nL_peel:")
        vstep(1, None, True)
        e(f"v_add_u32 v{vSA}, 256, v{vSA}")
    else:
        e(f"s_cmp_eq_u32 s{sPh}, 0\ns_cbranch_scc1 L_v2k")
    e("L_drain:")
    tr()
    rdsc()
    e(f"s_lshl_b32 s{sT0}, s{sWave}, 2\nv_mov_b32 v{vT2}, s{sT0}")
    e("s_waitcnt lgkmcnt(0)")
    soft4()
    wavered(vL, "add", s0)
    e(f"ds_write_b32 v{vT2}, v{vL} offset:{L_LS}")
    e("s_waitcnt lgkmcnt(0)\ns_barrier")
    for g in range(4):
        if g == 2: flip()
        ands(g & 1)
        for t in range(4):
            e(f"s_waitcnt vmcnt({15 - 4*g - t})"); pv(4*g, [t])
    stamp(3)
    if clk: e(f"s_memtime s[{sSt+2}:{sSt+3}]")
    if mlearly and "e" not in abl and not hml: e(f"buffer_load_dwordx2 {vr(vML, 2)}, v{vRow}, s[{sWS}:{sWS+3}], s{sRed} offen offset:{PLEN} sc1")
    else: e("s_nop 0")
    e("s_mov_b32 exec_lo, 0x00ff00ff\ns_mov_b32 exec_hi, 0xff00ff00\ns_nop 4")
    e(f"ds_write_b128 v{vOw}, {vr(vO)} offset:{L_OB}")
    e("s_mov_b64 exec, -1")
    e("s_waitcnt lgkmcnt(0)\ns_barrier")
    e("L_proj:")
    for w in range(4): e(f"ds_read_b64 {vr(vB+2*w, 2)}, v{vA8} offset:{L_OB + w*512}")
    e("s_waitcnt lgkmcnt(2)")
    e(f"v_add_f32 v{vB}, v{vB}, v{vB+2}\nv_add_f32 v{vB+1}, v{vB+1}, v{vB+3}")
    e("s_waitcnt lgkmcnt(0)")
    e(f"v_add_f32 v{vB+4}, v{vB+4}, v{vB+6}\nv_add_f32 v{vB+5}, v{vB+5}, v{vB+7}")
    e(f"v_add_f32 v{vB}, v{vB}, v{vB+4}\nv_add_f32 v{vB+1}, v{vB+1}, v{vB+5}")
    if sm: e(f"v_cvt_pk_bf16_f32 v{vP0}, v{vB}, 0\nv_cvt_pk_bf16_f32 v{vP1}, v{vB+1}, 0")
    else: e(f"v_cvt_pk_bf16_f32 v{vP0}, v{vB}, v{vB}\nv_cvt_pk_bf16_f32 v{vP1}, v{vB+1}, v{vB+1}")
    e(f"ds_write_b64 v{vA8}, {vr(vP0, 2)} offset:{L_DUP}")
    val = [vB+8, vB+12, vQ, vO]
    for u in range(4): e(f"ds_read_b128 {vr(val[u])}, v{vA64} offset:{L_DUP + 16*u}")
    def om(t):
        bp = vB + 4 * (t & 1)
        for cb in range(2):
            src = "0" if t == 0 else vr(vS+4*cb)
            e(f"v_mfma_f32_16x16x32_bf16 {vr(vS+4*cb)}, {vr(bp)}, {vr(vW+4*(2*t+cb))}, {src}")
    if sm:
        def sp(u):
            for cb in range(2): e(f"v_smfmac_f32_16x16x64_bf16 {vr(vS+4*cb)}, {vr(vB+4*(u&1))}, {vr(vW+8*(2*u+cb), 8)}, v{vIx}")
        for j in range(8): e(f"v_mov_b32 v{vS+j}, 0")
        for u in range(8):
            if u % 2 == 0: e(f"s_waitcnt lgkmcnt({3 - u//2})")
            for r in range(4): e(f"v_and_b32 v{vB+4*(u&1)+r}, v{val[u>>1] + 2*(u&1) + (r>>1)}, v{(vN0, vN1)[r&1]}")
            if u > 0: sp(u-1)
        sp(7)
    else:
        for t in range(16):
            if t % 4 == 0: e(f"s_waitcnt lgkmcnt({3 - t//4})")
            bs = vB + 4 * (t & 1)
            for j in range(4): e(f"v_and_b32 v{bs+j}, v{val[t>>2] + (t&3)}, v{vM+j}")
            if t > 0: om(t-1)
        om(15)
    e("s_nop 7")
    for j in range(4): e(f"v_permlane32_swap_b32 v{vS+j}, v{vS+4+j}")
    for j in range(4): e(f"v_add_f32_dpp v{vS+j}, v{vS+4+j}, v{vS+j} {dpp('row_ror:8')}")
    if pb16:
        e(f"v_cvt_pk_bf16_f32 v{vS}, v{vS}, v{vS+1}\nv_cvt_pk_bf16_f32 v{vS+1}, v{vS+2}, v{vS+3}")
        e(f"v_min_u32 v{vS}, -2, v{vS}\nv_min_u32 v{vS+1}, -2, v{vS+1}")
    else:
        for j in range(4): e(f"v_and_b32 v{vS+j}, -2, v{vS+j}")
    if defer or batchB: e(f"s_cmp_eq_u32 s{sWave}, {NW}\ns_cbranch_scc1 L_h_projret")
    e("s_mov_b32 exec_lo, 0x00ff00ff\ns_mov_b32 exec_hi, 0x00ff00ff")
    PW = "dwordx2" if pb16 else "dwordx4"; PN = 2 if pb16 else 4
    e(f"buffer_store_{PW} {vr(vS, PN)}, v{vSt}, s[{sWS}:{sWS+3}], s{sP if swp else sRow} offen sc1")
    e("s_mov_b64 exec, -1")
    if not (defer or batchB): e(f"s_cmp_eq_u32 s{sWave}, {NW}\ns_cbranch_scc1 L_h_projret")
    stamp(4)
    if clk: e(f"s_memtime s[{sSt+4}:{sSt+5}]\ns_waitcnt lgkmcnt(0)\ns_sub_u32 s{sIt}, s{sSt+4}, s{sSt+2}\ns_mov_b64 s[{sSt+2}:{sSt+3}], s[{sSt+6}:{sSt+7}]\ns_mov_b64 s[{sSt+4}:{sSt+5}], s[{sSt+8}:{sSt+9}]")
    if "e" in abl: e("s_branch L_done")
    if "B" in abl: e("s_bitcmp1_b32 s2, 0\ns_cbranch_scc1 L_done")
    if "A" in abl: e("s_bitcmp0_b32 s2, 0\ns_cbranch_scc1 L_done")
    L_WT = 2816
    def mlpoll():
        e("L_pollml:")
        e(f"v_or_b32 v{vT}, v{vML}, v{vML+1}\nv_and_b32 v{vT}, 1, v{vT}\nv_cmp_eq_u32 vcc, 1, v{vT}")
        e("s_and_b64 exec, exec, vcc\ns_cbranch_scc0 L_mlok")
        if psl: e(f"s_sleep {psl}")
        e(f"buffer_load_dwordx2 {vr(vML, 2)}, v{vRow}, s[{sWS}:{sWS+3}], s{sRed} offen offset:{PLEN} sc1")
        e("s_waitcnt vmcnt(0)\ns_branch L_pollml")
        e("L_mlok:\ns_mov_b64 exec, -1")
    def weights():
        e(f"v_max_f32_dpp v{vP0}, v{vML+1}, v{vML+1} {dpp('quad_perm:[1,0,3,2]')}")
        e(f"v_sub_f32 v{vP0}, v{vML+1}, v{vP0}\nv_mul_f32 v{vP0}, s{sCs}, v{vP0}\nv_exp_f32 v{vP0}, v{vP0}\ns_nop 0")
        e(f"v_mul_f32 v{vP1}, v{vP0}, v{vML}\ns_nop 1")
        e(f"v_add_f32_dpp v{vP1}, v{vP1}, v{vP1} {dpp('quad_perm:[1,0,3,2]')}")
        e(f"v_rcp_f32 v{vP1}, v{vP1}\ns_nop 0")
        e(f"v_mul_f32 v{vP0}, v{vP0}, v{vP1}")
    if hml:
        e("s_barrier")
        e(f"buffer_load_{PW} {vr(vB+4 if dpoll else vB, PN)}, v{vRow}, s[{sWS}:{sWS+3}], s{sRed2} offen sc1")
        e(f"ds_read_b32 v{vP0}, v{vA8} offset:{L_WT}")
        e(f"v_lshrrev_b32 v{vT2}, 3, v{vLane}\nv_add_u32 v{vT2}, s{sOut}, v{vT2}\ns_waitcnt lgkmcnt(0)")
    else:
        if not mlearly: e(f"buffer_load_dwordx2 {vr(vML, 2)}, v{vRow}, s[{sWS}:{sWS+3}], s{sRed} offen offset:{PLEN} sc1\ns_waitcnt vmcnt(0)")
        e("s_waitcnt vmcnt(1)")
        mlpoll()
        e(f"buffer_load_{PW} {vr(vB, PN)}, v{vRow}, s[{sWS}:{sWS+3}], s{sRed2} offen sc1")
        e(f"v_lshrrev_b32 v{vT2}, 3, v{vLane}\nv_add_u32 v{vT2}, s{sOut}, v{vT2}")
        weights()
    PLD = f"buffer_load_{PW} {vr(vB+4 if dpoll else vB, PN)}, v{vRow}, s[{sWS}:{sWS+3}], s{sRed2} offen sc1"
    if dpoll:
        assert pb16 and hml
        e("s_waitcnt vmcnt(0)")
        e(f"v_max_u32 v{vT}, v{vB+4}, v{vB+5}\nv_cmp_eq_u32 vcc, -1, v{vT}\ns_and_b64 exec, exec, vcc\ns_cbranch_scc0 L_pok")
        e(PLD)
        e(f"L_poll:\ns_sleep {dpoll}\n" + PLD + "\ns_waitcnt vmcnt(1)")
        e(f"v_max_u32 v{vT}, v{vB+4}, v{vB+5}\nv_cmp_eq_u32 vcc, -1, v{vT}\ns_and_b64 exec, exec, vcc\ns_cbranch_scc1 L_poll")
        e("L_pok:\ns_mov_b64 exec, -1")
        e(f"v_and_b32 v{vB+3}, 0xffff0000, v{vB+5}\nv_lshlrev_b32 v{vB+2}, 16, v{vB+5}\nv_and_b32 v{vB+1}, 0xffff0000, v{vB+4}\nv_lshlrev_b32 v{vB}, 16, v{vB+4}")
    else:
        e("L_poll:\ns_waitcnt vmcnt(0)")
        if pb16: e(f"v_max_u32 v{vT}, v{vB}, v{vB+1}\nv_cmp_eq_u32 vcc, -1, v{vT}")
        else: e(f"v_or3_b32 v{vT}, v{vB}, v{vB+1}, v{vB+2}\nv_or_b32 v{vT}, v{vT}, v{vB+3}\nv_and_b32 v{vT}, 1, v{vT}\nv_cmp_eq_u32 vcc, 1, v{vT}")
        e("s_and_b64 exec, exec, vcc\ns_cbranch_scc0 L_pok")
        if psl2: e(f"s_sleep {psl2}")
        e(PLD)
        e("s_branch L_poll")
        e("L_pok:\ns_mov_b64 exec, -1")
        if pb16:
            e(f"v_and_b32 v{vB+3}, 0xffff0000, v{vB+1}\nv_lshlrev_b32 v{vB+2}, 16, v{vB+1}\nv_and_b32 v{vB+1}, 0xffff0000, v{vB}\nv_lshlrev_b32 v{vB}, 16, v{vB}")
    for j in range(4): e(f"v_mul_f32 v{vB+j}, v{vB+j}, v{vP0}")
    e("s_nop 0")
    e(f"v_permlane16_swap_b32 v{vB}, v{vB+1}\nv_permlane16_swap_b32 v{vB+2}, v{vB+3}\ns_nop 0")
    e(f"v_add_f32 v{vB}, v{vB}, v{vB+1}\nv_add_f32 v{vB+2}, v{vB+2}, v{vB+3}\ns_nop 1")
    e(f"v_permlane32_swap_b32 v{vB}, v{vB+2}\ns_nop 1")
    e(f"v_add_f32 v{vB}, v{vB}, v{vB+2}\ns_nop 1")
    for ctl in ("row_ror:8", "row_ror:4", "row_ror:2"):
        e(f"v_add_f32_dpp v{vB}, v{vB}, v{vB} {dpp(ctl)}\ns_nop 1")
    e(f"v_add_f32_dpp v{vB}, v{vB}, v{vB} {dpp('row_ror:1')}")
    e(f"v_cvt_pk_bf16_f32 v{vB}, v{vB}, v{vB}")
    e("s_mov_b32 exec_lo, 0x00010001\ns_mov_b32 exec_hi, 0x00010001")
    e(f"global_store_short v{vT2}, v{vB}, s[24:25] {opol}")
    e("L_done:")
    if dbgst:
        stamp(5)
        e(f"s_cmp_lg_u32 s{sWave}, 0\ns_cbranch_scc1 L_end\ns_cmp_lg_u32 s2, 36\ns_cbranch_scc1 L_end\ns_waitcnt lgkmcnt(0)\ns_mov_b64 exec, 1")
        for i in range(1, 6): e(f"s_sub_u32 s{sT0}, s{sSt+2*i}, s{sSt}\nv_mov_b32 v{vT}, s{sT0}\nglobal_store_dword v{vZ}, v{vT}, s[26:27] offset:{4*i}")
        for i, r in enumerate([6, 8, 16, 18, 28]): e(f"s_lshr_b32 s{sT0}, s{r}, 21\ns_lshl_b32 s{sT1}, s{r+1}, 11\ns_or_b32 s{sT0}, s{sT0}, s{sT1}\ns_and_b32 s{sT0}, s{sT0}, 0xffff\nv_mov_b32 v{vT}, s{sT0}\nglobal_store_dword v{vZ}, v{vT}, s[26:27] offset:{32+4*i}")
    elif probe is not None:
        stamp(5)
        if pwg is not None: e(f"s_cmp_lg_u32 s2, {pwg}\ns_cbranch_scc1 L_end\ns_cmp_lg_u32 s{sWave}, 0\ns_cbranch_scc1 L_end")
        e("s_waitcnt lgkmcnt(0)")
        e(f"s_sub_u32 s{sT0}, s{sSt+2*probe}, s{sSt}\ns_add_u32 s{sT0}, s{sT0}, 15000")
        e(f"L_spin:\ns_sleep 2\ns_memrealtime s[62:63]\ns_waitcnt lgkmcnt(0)\ns_sub_u32 s{sT1}, s62, s{sSt}\ns_cmp_lt_u32 s{sT1}, s{sT0}\ns_cbranch_scc1 L_spin")
    elif stamps:
        stamp(5)
        e(f"s_cmp_lg_u32 s{sWave}, {4 if hst else 0}\ns_cbranch_scc1 L_end\nL_wst:")
        e("s_waitcnt lgkmcnt(0)")
        e("s_mov_b64 exec, 1\ns_add_u32 s28, s28, 0x20000000\ns_addc_u32 s29, s29, 0")
        e(f"s_lshl_b32 s{sT0}, s2, 6\nv_mov_b32 v{vT}, s{sT0}\ns_getreg_b32 s{sT0}, hwreg(HW_REG_XCC_ID)")
        for i in range(12): e(f"v_mov_b32 v{vR+i}, s{sSt+i}")
        e(f"v_mov_b32 v{vR+12}, s{sIt}\nv_mov_b32 v{vR+13}, 0\nv_mov_b32 v{vR+14}, s{sT0}\nv_mov_b32 v{vR+15}, 0")
        for i in range(4): e(f"global_store_dwordx4 v{vT}, {vr(vR+4*i)}, s[28:29] offset:{16*i}")
        if trace:
            e(f"s_mov_b64 exec, -1\ns_lshl_b32 s{sT0}, s2, 9\ns_add_u32 s{sT0}, s{sT0}, 0x800000\nv_lshl_add_u32 v{vT2}, v{vLane}, 2, s{sT0}")
            e(f"global_store_dword v{vT2}, v{vTr}, s[28:29]\nglobal_store_dword v{vT2}, v{vTr+1}, s[28:29] offset:256")
    e("s_endpgm")
    e("L_tail_end:")
    def wread(t):
        for cb in range(2):
            if sm: e(f"ds_read_b128 {vr(vW+8*(2*(t>>1)+cb)+4*(t&1))}, v{vWb if t & 1 else vWa} offset:{L_WO + (t>>1)*2048 + cb*128}")
            else: e(f"ds_read_b128 {vr(vW+4*(2*t+cb))}, v{vWa} offset:{L_WO + t*1024 + cb*128}")
    e("L_wpiece:")
    for p in range(8):
        if p < 7: e(f"s_cmp_lg_u32 s{sT0}, {p}\ns_cbranch_scc1 L_wp{p+1}")
        wread(2*p); wread(2*p+1)
        e("s_branch L_vret")
        if p < 7: e(f"L_wp{p+1}:")
    e("L_v2k:")
    if pst == 1: stamp(1)
    e(f"v_and_b32 v{vT2}, 15, v{vLane}\nv_lshlrev_b32 v{vT2}, 4, v{vT2}")
    e(f"ds_read_b128 {vr(vQ)}, v{vT2} offset:{L_QT}")
    e(f"s_mov_b32 s{sPh}, 1\ns_mov_b32 s{sEnd}, 24")
    e(f"s_mov_b32 s{sNx}, s8\ns_mov_b32 s{sNx+1}, s9")
    e(f"v_mov_b32 v{vRm}, 0xff7fffff\nv_subrev_u32 v{vSA}, 1024, v{vSA}")
    e(f"s_lshl_b32 s{sT0}, s{sWave}, 2\nv_mov_b32 v{vT2}, s{sT0}")
    wavered(vL, "add", s0)
    e(f"ds_write_b32 v{vT2}, v{vL} offset:{L_LS}")
    e("s_mov_b32 exec_lo, 0x00ff00ff\ns_mov_b32 exec_hi, 0xff00ff00")
    e(f"ds_write_b128 v{vOw}, {vr(vO)} offset:{L_OB}")
    e("s_mov_b64 exec, -1")
    e(".p2align 6\nL_kloop:")
    switch()
    for st in range(2):
        e("s_barrier"); rdflag(); useflag()
        for g in range(2):
            r0 = 8 * st + 4 * g
            e("s_waitcnt vmcnt(12)")
            dots([ring(r0+t) for t in range(4)], kdst(st, g))
            pair(r0)
            red(st, g, 0)
            pair(r0+2)
    e(f"v_add_u32 v{vSA}, 256, v{vSA}")
    e(f"s_cmp_lt_u32 s{sIt}, s{sEnd}\ns_cbranch_scc1 L_kloop")
    if pst == 1: stamp(2)
    e(f"s_mov_b32 s{sPh}, 2\ns_mov_b32 s{sEnd}, 39\ns_add_u32 s{sNOff}, s{sOffA}, {15*0x10000}")
    e("s_branch L_k2v")
    e("L_helper:")
    e(f"s_setprio {hprio}")
    ids()
    if warm0 == 1:
        e(f"s_getpc_b64 s[30:31]\nL_pc0:\ns_sub_u32 s30, s30, L_pc0-{KN}\ns_subb_u32 s31, s31, 0\nv_lshlrev_b32 v{vT2}, 7, v{vLane}\nglobal_load_dword v{vRm}, v{vT2}, s[30:31]\nv_add_u32 v{vT2}, 8192, v{vT2}\nglobal_load_dword v{vRm}, v{vT2}, s[30:31]")
    e(f"v_mov_b32 v{vT}, {imask}\nds_write_b32 v{vZ}, v{vT} offset:{L_FLAG}")
    for j in range(4): e(f"v_mov_b32 v{vB+j}, -1")
    e(f"v_lshlrev_b32 v{vKV}, 4, v{vLane}")
    e("s_waitcnt lgkmcnt(0)")
    e(f"s_mov_b32 s{sWS}, s28\ns_mov_b32 s{sWS+1}, s29")
    e(f"s_mov_b32 s{sW}, s22\ns_mov_b32 s{sW+1}, s23")
    e("s_cmp_lg_u32 s2, 0\ns_cbranch_scc1 L_h_noinit")
    e(f"v_lshlrev_b32 v{vT2}, 8, v{vLane}")
    if init2: e("s_mov_b32 exec_hi, 0")
    for i in range(1 if init2 else 5):
        e(f"s_mov_b32 s{sT0}, {i*0x4000}\nbuffer_store_dword v{vZ}, v{vT2}, s[{sWS}:{sWS+3}], s{sT0} offen sc1")
    e("s_waitcnt vmcnt(0)")
    e(f"s_mov_b32 s64, 1\ns_atomic_add s64, s[26:27], 0")
    e("L_h_noinit:")
    if init2:
        e(f"s_lshl_b32 s{sT0}, s2, 8\ns_add_u32 s{sT0}, s{sT0}, {WS_FB}\ns_mov_b64 exec, 1\nbuffer_store_dword v{vZ}, v{vZ}, s[{sWS}:{sWS+3}], s{sT0} offen sc1\ns_mov_b64 exec, -1")
    for r in range(2):
        if "n" not in abl:
            if r == 0 or not bflag:
                if swp:
                    e(f"s_lshl_b32 s{sT0}, s{sReg}, 10\nv_add_u32 v{vSt}, s{sT0}, v{vKV}\ns_mov_b32 s{sP}, {WS_P2}")
                    swz(vSt, vT)
                    e(f"buffer_store_dwordx4 {vr(vB)}, v{vSt}, s[{sWS}:{sWS+3}], s{sP} offen sc1")
                else: e(f"buffer_store_dwordx4 {vr(vB)}, v{vKV}, s[{sWS}:{sWS+3}], s{sRow} offen sc1")
                if not pb16: e(f"buffer_store_dwordx4 {vr(vB)}, v{vKV}, s[{sWS}:{sWS+3}], s{sRow} offen offset:1024 sc1")
            e("s_mov_b64 exec, 0xff")
            e(f"buffer_store_dwordx4 {vr(vB)}, v{vKV}, s[{sWS}:{sWS+3}], s{sRow} offen offset:{PLEN} sc1")
            e("s_mov_b64 exec, -1")
        if r == 0: e(f"s_add_u32 s{sRow}, s{sRow}, {256*ROW}")
    consts(None); consts2(None)
    e(f"s_lshl_b32 s{sOff}, s{sH}, 14\ns_add_u32 s{sOff}, s{sOff}, {WS_QX}")
    e(f"s_lshl_b32 s{sT1}, s{sJ}, 11\ns_add_u32 s{sT1}, s{sT1}, s{sOff}")
    e(f"s_lshl_b32 s{sNOff}, s{sH}, 8")
    if preread:
        e(f"buffer_load_dwordx4 {vr(vW)}, v{vKV}, s[{sWS}:{sWS+3}], s{sT1} offen\nbuffer_load_dwordx4 {vr(vW)}, v{vKV}, s[{sWS}:{sWS+3}], s{sT1} offen offset:1024")
    e(f"v_and_b32 v{vT2}, 31, v{vLane}\nv_lshlrev_b32 v{vP0}, 3, v{vT2}\nv_lshlrev_b32 v{vRow}, 8, v{vT2}\nv_lshlrev_b32 v{vT2}, 4, v{vT2}\nv_lshrrev_b32 v{vT}, 5, v{vLane}\nv_lshl_add_u32 v{vT2}, v{vT}, 11, v{vT2}")
    e(f"s_lshl_b32 s{sT0}, s{sB}, 9\nv_add_u32 v{vT2}, s{sT0}, v{vT2}")
    e(f"v_lshl_add_u32 v{vP0}, v{vT}, 8, v{vP0}")
    e(f"v_mov_b32 v{vP1}, s{sNOff}")
    if swq:
        e(f"v_add_u32 v{vT2}, s{sOff}, v{vT2}\nv_add_u32 v{vRm}, s{sT1}, v{vKV}")
        swz(vT2, vT); swz(vRm, vT)
        e(f"v_xor_b32 v{vSA}, 0x100, v{vRm}")
    e("s_barrier")
    hstamp(1)
    for w in range(4):
        for u in range(2): e(f"ds_read_b128 {vr(vR+8*w+4*u)}, v{vKV} offset:{L_QP + w*2048 + u*1024}")
    e(f"global_load_dword v{vT}, v{vZ}, s[26:27] sc1")
    e("s_waitcnt lgkmcnt(0)")
    for i in range(16): e(f"v_add_f32 v{vR+i}, v{vR+i}, v{vR+16+i}")
    for i in range(8): e(f"v_add_f32 v{vR+i}, v{vR+i}, v{vR+8+i}")
    if "x" not in abl:
        if swq:
            e(f"buffer_store_dwordx4 {vr(vR)}, v{vRm}, s[{sWS}:{sWS+3}], 0 offen sc1")
            e(f"buffer_store_dwordx4 {vr(vR+4)}, v{vSA}, s[{sWS}:{sWS+3}], 0 offen sc1")
        else:
            e(f"buffer_store_dwordx4 {vr(vR)}, v{vKV}, s[{sWS}:{sWS+3}], s{sT1} offen sc1")
            if not qhalf: e(f"buffer_store_dwordx4 {vr(vR+4)}, v{vKV}, s[{sWS}:{sWS+3}], s{sT1} offen offset:1024 sc1")
    hstamp(2)
    e("s_waitcnt vmcnt(0)")
    e(f"L_h_flag:\nv_cmp_ne_u32 vcc, 0, v{vT}\ns_cbranch_vccnz L_h_flagok\nglobal_load_dword v{vT}, v{vZ}, s[26:27] sc1\ns_waitcnt vmcnt(0)\ns_branch L_h_flag\nL_h_flagok:")
    hstamp(3)
    slp = f"s_sleep {qsl}\n" if qsl else ""
    if qmode == "v":
        e(f"s_mov_b32 s65, 1\ns_atomic_add s65, s[28:29], s{sNOff}")
        if nb: e("s_barrier")
        if "p" not in abl: e(f"s_branch L_h_qc1\nL_h_qc:\n{slp}L_h_qc1:\nglobal_load_dword v{vT}, v{vP1}, s[28:29] sc1\ns_waitcnt vmcnt(0)\nv_cmp_ne_u32 vcc, 8, v{vT}\ns_cbranch_vccnz L_h_qc")
    else:
        e(f"s_mov_b32 s65, 1\ns_atomic_add s65, s[28:29], s{sNOff} glc")
        if nb: e("s_barrier")
        e(f"s_waitcnt lgkmcnt(0)\ns_cmp_eq_u32 s65, 7\ns_cbranch_scc1 L_h_qcok")
        if nb: e("s_branch L_h_qc1")
        e(f"L_h_qc:\n{slp}L_h_qc1:")
        if qmode == "s": e(f"s_load_dword s65, s[28:29], s{sNOff} glc")
        else: e(f"s_mov_b32 s65, 0\ns_atomic_add s65, s[28:29], s{sNOff} glc")
        e(f"s_waitcnt lgkmcnt(0)\ns_cmp_lg_u32 s65, 8\ns_cbranch_scc1 L_h_qc\nL_h_qcok:")
    hstamp(4)
    for i in range(4):
        if swq: e(f"buffer_load_dwordx4 {vr(vR+4*i)}, v{vT2}, s[{sWS}:{sWS+3}], 0 offen offset:{1024*i} sc1"); continue
        if qhalf:
            if i == 0: e(f"v_lshrrev_b32 v{vT2}, 4, v{vLane}\nv_lshlrev_b32 v{vT2}, 11, v{vT2}\nv_and_b32 v{vT}, 15, v{vLane}\nv_lshl_add_u32 v{vT2}, v{vT}, 4, v{vT2}\ns_lshl_b32 s{sT0}, s{sB}, 8\nv_add_u32 v{vT2}, s{sT0}, v{vT2}")
            if i & 1 == 0: e(f"buffer_load_dwordx4 {vr(vR+4*i)}, v{vT2}, s[{sWS}:{sWS+3}], s{sOff} offen sc1")
        elif "r" not in abl: e(f"buffer_load_dwordx4 {vr(vR+4*i)}, v{vT2}, s[{sWS}:{sWS+3}], s{sOff} offen sc1")
        if i < 3: e(f"s_add_u32 s{sOff}, s{sOff}, 4096")
    e("s_waitcnt vmcnt(0)")
    for j in range(4): e(f"v_add_f32 v{vR+j}, v{vR+j}, v{vR+4+j}")
    for j in range(4): e(f"v_add_f32 v{vR+8+j}, v{vR+8+j}, v{vR+12+j}")
    e("s_nop 1")
    for j in range(4): e(f"v_permlane32_swap_b32 v{vR+j}, v{vR+8+j}")
    e("s_nop 1")
    for j in range(4): e(f"v_add_f32 v{vR+j}, v{vR+j}, v{vR+8+j}")
    e(f"v_cvt_pk_bf16_f32 v{vR}, v{vR}, v{vR+1}\nv_cvt_pk_bf16_f32 v{vR+1}, v{vR+2}, v{vR+3}")
    e(f"ds_write_b64 v{vP0}, {vr(vR, 2)} offset:{L_QT}")
    hstamp(5)
    e(f"s_mov_b32 s{sIt}, 3")
    if fg < 8:
        par = lambda v: bin(v).count("1") & 1
        def sub(x, k):
            if fg == 4: return par(x & [2, 5, 4, 3, 7, 2, 4, 7][k])
            d = [1, 3, 5, 7, 1, 2, 3, 5][k]
            reps = sorted({min(y, y ^ d) for y in range(8)})
            return reps.index(min(x, x ^ d))
        T = [sum(sub(x, k) << (2*k) for k in range(8)) for x in range(8)]
        e(f"s_mov_b32 s88, {T[0] | T[1] << 16}\ns_mov_b32 s89, {T[2] | T[3] << 16}\ns_mov_b32 s90, {T[4] | T[5] << 16}\ns_mov_b32 s91, {T[6] | T[7] << 16}")
        e(f"s_bitcmp1_b32 s2, 2\ns_cselect_b64 s[88:89], s[90:91], s[88:89]\ns_and_b32 s90, s2, 3\ns_lshl_b32 s90, s90, 4\ns_lshr_b64 s[88:89], s[88:89], s90")
    if sched:
        sm_ = sum(1 << i for i in range(40) if sched[i] == "1")
        e(f"s_mov_b32 s86, {sm_ & 0xffffffff}\ns_mov_b32 s87, {sm_ >> 32}\ns_mov_b32 s65, 0")
    vNew, vOld, vMb, vLn = vML, vML+1, vOw, vSA
    if hlp:
        e(f"s_mov_b32 s{sPk}, 0\ns_mov_b32 s{sPkB}, 0\ns_mov_b32 s{sRq}, 0\ns_mov_b32 s{sRk}, 0\nv_mov_b32 v{vOld}, 0\nv_mov_b32 v{vNew}, 0")
        e(f"s_lshl_b32 s{sReg}, s{sReg}, 8\ns_bitset1_b32 s{sReg}, 31")
        e(f"v_and_b32 v{vMb}, 31, v{vLane}\nv_lshlrev_b32 v{vLn}, 7, v{vMb}\nv_lshlrev_b32 v{vMb}, 2, v{vMb}")
        if hpat:
            e(f"v_and_b32 v{vLn}, 3, v{vLane}\nv_lshlrev_b32 v{vLn}, 7, v{vLn}\nv_bfe_u32 v{vT}, v{vLane}, 2, 1\nv_lshl_add_u32 v{vLn}, v{vT}, 15, v{vLn}\nv_bfe_u32 v{vT}, v{vLane}, 3, 2\nv_lshl_add_u32 v{vLn}, v{vT}, 9, v{vLn}")
            e(f"s_and_b32 s{sT0}, s2, 15\ns_lshl_b32 s{sT0}, s{sT0}, 11\ns_lshr_b32 s{sT1}, s2, 4\ns_lshl_b32 s{sT1}, s{sT1}, 16\ns_add_u32 s{sT0}, s{sT0}, s{sT1}\nv_add_u32 v{vLn}, s{sT0}, v{vLn}")
    def mask(d, n=8): return sum(1 << i for i in range(n) if ((i+1)*d)//n != (i*d)//n)
    tab = sum(mask(d) << (8*d) for d in range(8))
    e(f"s_lshr_b32 s{sNOff}, s2, 3\ns_and_b32 s{sOut}, s2, 7\ns_mov_b32 s{sInt}, {off*8}\ns_mov_b32 s{sMk}, 0\ns_mov_b32 s91, 0\ns_mov_b32 s84, {-jn*jnd}\ns_mov_b32 s{sNx}, {tab & 0xffffffff}\ns_mov_b32 s{sNx+1}, {tab >> 32}")
    e(f"s_lshl_b32 s{sOff}, s{sH}, 17\ns_mov_b32 s{sLd}, {L_WO}")
    e("s_waitcnt lgkmcnt(0)")
    assert D1 + 8 < PB and PB + 4 < D2 and D2 + 8 < EW
    def dma8(lab, pad):
        e(f"s_cmp_eq_u32 s{sPh}, 0\ns_cbranch_scc1 {lab}")
        for i in range(2):
            e(f"s_mov_b32 m0, s{sLd}\ns_add_u32 s{sLd}, s{sLd}, {4096 + (128 if pad and i else 0)}")
            for t in range(4):
                e(f"buffer_load_dwordx4 v{vKV}, s[{sW}:{sW+3}], s{sOff} offen offset:{t*1024} {wopol} lds")
            e(f"s_add_u32 s{sOff}, s{sOff}, 4096")
        e(f"{lab}:")
    def calcml(dst):
        e(f"ds_read_b128 {vr(vS)}, v{vZ} offset:{L_LS}\nds_read_b128 {vr(vS+4)}, v{vZ} offset:{L_MX}\ns_waitcnt lgkmcnt(0)")
        e(f"v_add_f32 v{s0}, v{s0}, v{s1}\nv_add_f32 v{s2_}, v{s2_}, v{s3}\nv_max3_f32 v{dst+1}, v{vS+4}, v{vS+5}, v{vS+6}")
        e(f"v_add_f32 v{dst}, v{s0}, v{s2_}\nv_max_f32 v{dst+1}, v{dst+1}, v{vS+7}")
        e(f"v_and_b32 v{dst}, -2, v{dst}\nv_and_b32 v{dst+1}, -2, v{dst+1}")
    def putml(src):
        e(f"s_mov_b64 exec, {0xffff if mlfull else 1}")
        e(f"buffer_store_dwordx2 {vr(src, 2)}, v{vA8}, s[{sWS}:{sWS+3}], s{sRow} offen offset:{PLEN} sc1")
        e("s_mov_b64 exec, -1")
    def pubml(): calcml(vL); putml(vL)
    def putB():
        e("s_mov_b32 exec_lo, 0x00ff00ff\ns_mov_b32 exec_hi, 0x00ff00ff")
        for k in range(4):
            if swp:
                e(f"buffer_store_{PW} {vr(vR+PN*k, PN)}, v{vSt}, s[{sWS}:{sWS+3}], s{sP} offen sc1")
                if k < 3: e(f"v_xor_b32 v{vSt}, {0x10280 if k == 1 else 0x10200}, v{vSt}")
            else: e(f"buffer_store_{PW} {vr(vR+PN*k, PN)}, v{vSt}, s[{sWS}:{sWS+3}], s{sRow} offen offset:{k*(512>>hs)} sc1")
        e("s_mov_b64 exec, -1")
    e("L_h_loop:")
    e("s_barrier")
    lf = fg.bit_length() - 1
    def cp_addr(dk, dst, base):
        e((f"s_add_u32 s{sT0}, s65, {dk}" if sched else f"s_add_u32 s{sT0}, s{sIt}, {dk-3}"))
        e(f"s_mul_i32 s{dst}, s{sT0}, s{sOut}\ns_add_u32 s{dst}, s{dst}, s{sNOff}\ns_and_b32 s{dst}, s{dst}, 31")
        if rw:
            nl = 5 - rw
            if dk == 0: e(f"s_lshr_b32 s93, s{dst}, {nl}\ns_xor_b32 s93, s93, s{sT0}\ns_and_b32 s93, s93, {(1 << rw) - 1}")
            e(f"s_and_b32 s{dst}, s{dst}, {(1 << nl) - 1}\ns_lshl_b32 s{base}, s{sT0}, {nl}\ns_add_u32 s{dst}, s{dst}, s{base}\ns_mul_i32 s{dst}, s{dst}, {37*256}\ns_and_b32 s{dst}, s{dst}, 0xff00\ns_add_u32 s{dst}, s{dst}, {WS_FB}")
            e(f"s_lshr_b32 s{base}, s{sT0}, {8 - nl}\ns_lshl_b32 s{base}, s{base}, 3")
            return
        e(f"s_lshl_b32 s{base}, s{sT0}, {8 - lf}\ns_add_u32 s{dst}, s{dst}, s{base}\ns_and_b32 s{dst}, s{dst}, 255\ns_lshl_b32 s{dst}, s{dst}, 8\ns_add_u32 s{dst}, s{dst}, {WS_FB}")
        e(f"s_andn2_b32 s{base}, s{sT0}, {fg-1}")
    def request():
        e(f"s_sub_i32 s{sT0}, s{sPk}, s{sPkB}\ns_cmp_lt_i32 s{sT0}, {pt}\ns_cbranch_scc1 L_h_norq")
        e(f"s_mov_b32 s{sMk}, {jmax}")
        e(f"s_cmp_ge_u32 s{sIt}, 24\ns_cselect_b32 s{sT0}, 2, 1\ns_cmp_lt_u32 s{sIt}, 8\ns_cselect_b32 s{sT0}, 0, s{sT0}\ns_cmp_le_u32 s{sT0}, s{sRq}\ns_cbranch_scc1 L_h_norq")
        e(f"s_mov_b32 s{sRq}, s{sT0}\ns_lshl_b32 s{sT1}, s{sT0}, 2\ns_mov_b32 s{sPk}, 1\ns_atomic_add s{sPk}, s[26:27], s{sT1} glc\ns_waitcnt lgkmcnt(0)")
        e(f"s_cmp_ge_u32 s{sPk}, {hcap}\ns_cbranch_scc1 L_h_norq")
        e(f"s_add_u32 s{sT0}, s{sT0}, 1\ns_lshl_b32 s{sT0}, s{sT0}, 4\ns_add_u32 s{sPk}, s{sPk}, s{sT0}\ns_lshl_b32 s{sT1}, s{sPk}, 2\ns_or_b32 s{sPk}, s{sReg}, s{sIt}\ns_atomic_or s{sPk}, s[26:27], s{sT1} glc\ns_waitcnt lgkmcnt(0)")
        e(f"L_h_norq:\ns_mov_b32 s{sPk}, 0\ns_mov_b32 s{sPkB}, 0")
    if hlp:
        if not pk2: e("s_waitcnt lgkmcnt(0)"); request()
        if mbs: e(f"s_bitcmp1_b32 s{sIt}, 0\ns_cbranch_scc1 L_h_nomb")
        e(f"global_load_dword v{vNew}, v{vMb}, s[26:27] offset:128 sc1")
        if mbs: e("L_h_nomb:")
    if dummy:
        for dd in range(dummy):
            e(f"s_lshl_b32 s93, s{sIt}, 5\ns_add_u32 s93, s93, s{sNOff}\ns_add_u32 s93, s93, {64*dd}\ns_and_b32 s93, s93, 255\ns_lshl_b32 s93, s93, 8\ns_andn2_b32 s93, s93, {((1 << dsh) - 1) << 8}\ns_add_u32 s93, s93, {WS_FB+4}")
            if dk_ == "a": e(f"s_atomic_add s{94+dd}, s[28:29], s93 glc")
            elif dk_ == "n": e(f"s_atomic_add s{94+dd}, s[28:29], s93")
            elif dk_ == "z": e(f"s_mov_b32 s{94+dd}, 0\ns_atomic_add s{94+dd}, s[28:29], s93 glc")
            elif dk_ == "l": e(f"s_load_dword s{94+dd}, s[28:29], s93 glc")
            elif dk_ == "v": e(f"s_mov_b64 exec, 1\nbuffer_load_dword v{vNmc}, v{vZ}, s[{sWS}:{sWS+3}], s93 offen sc1\ns_mov_b64 exec, -1")
            elif dk_ == "s": e(f"s_mov_b64 exec, 1\nbuffer_store_dword v{vZ}, v{vZ}, s[{sWS}:{sWS+3}], s93 offen sc1\ns_mov_b64 exec, -1")
            elif dk_ == "p": e(f"s_mov_b64 exec, 1\nbuffer_store_dword v{vZ}, v{vZ}, s[{sWS}:{sWS+3}], s93 offen\ns_mov_b64 exec, -1")
            elif dk_ == "w": e(f"s_mov_b64 exec, 1\nbuffer_atomic_add v{vNmc}, v{vZ}, s[{sWS}:{sWS+3}], s93 offen sc0\ns_mov_b64 exec, -1")
            elif dk_ == "t": e(f"s_mov_b64 exec, 1\nbuffer_atomic_add v{vNmc}, v{vZ}, s[{sWS}:{sWS+3}], s93 offen sc0 nt\ns_mov_b64 exec, -1")
    if rr:
        e(f"s_cmp_eq_u32 s91, 0\ns_cbranch_scc1 L_h_norr\ns_load_dword s88, s[28:29], s90 glc\nL_h_norr:")
    if sched: e(f"s_bitcmp0_b64 s[86:87], s{sIt}\ns_cbranch_scc1 L_h_nocp")
    cp_addr(0, sT1, sEnd)
    if rw:
        e(f"s_cmp_eq_u32 s93, 0\ns_cselect_b32 s93, 7, 8\ns_cbranch_scc1 L_h_wr\ns_load_dword s{sT2}, s[28:29], s{sT1} glc\ns_branch L_h_rd\nL_h_wr:")
    e(f"s_mov_b32 s{sT2}, 1\ns_atomic_add s{sT2}, s[28:29], s{sT1} glc")
    if rw: e("L_h_rd:")
    if pb:
        e(f"s_mov_b32 s88, 8\ns_mov_b32 s89, 0\ns_cmp_ge_i32 s{sRk}, {pbe}\ns_cbranch_scc1 L_h_nopb\ns_sub_u32 s{sT0}, s{sIt}, {pbr[0]}\ns_cmp_ge_u32 s{sT0}, {pbr[1] - pbr[0]}\ns_cbranch_scc1 L_h_nopb")
        cp_addr(-1, 90, 89)
        e("s_load_dword s88, s[28:29], s90 glc\nL_h_nopb:")
    if hlp and pk2:
        e(f"s_cmp_lt_i32 s{sRk}, {8 - 8//fg}\ns_cbranch_scc1 L_h_nocp\ns_sub_u32 s{sT0}, s{sIt}, {pk2[0]}\ns_cmp_ge_u32 s{sT0}, {pk2[1] - pk2[0]}\ns_cbranch_scc1 L_h_nocp")
        cp_addr(pd, 92, sPkB)
        e(f"s_load_dword s{sPk}, s[28:29], s92 glc")
    if sched or pk2: e(f"L_h_nocp:")
    e(f"s_cmp_lg_u32 s{sIt}, {D2}\ns_cbranch_scc1 L_h_nosw")
    e(f"s_mov_b32 s{sW}, s12\ns_mov_b32 s{sW+1}, s13\ns_lshl_b32 s{sOff}, s{sH}, 17\ns_mov_b32 s{sLd}, {L_WO}\nL_h_nosw:")
    e(f"s_sub_u32 s{sT0}, s{sIt}, {D1}\ns_cmp_lt_u32 s{sT0}, 8\ns_cselect_b32 s{sPh}, 1, 0")
    e(f"s_sub_u32 s{sT0}, s{sIt}, {D2}\ns_cmp_lt_u32 s{sT0}, 8\ns_cselect_b32 s{sPh}, 1, s{sPh}")
    if not hlp: e(f"s_cmp_eq_u32 s{sIt}, {D1+8}\ns_cbranch_scc1 L_h_wait\ns_cmp_lg_u32 s{sIt}, {D2+8}\ns_cbranch_scc1 L_h_nowait\nL_h_wait:\ns_waitcnt vmcnt(0)\nL_h_nowait:")
    dma8("L_h_d1", False)
    e(f"s_sub_u32 s{sRed}, s{sIt}, {PB}\ns_cmp_ge_u32 s{sRed}, 4\ns_cbranch_scc1 L_h_now")
    for t in range(16): wread(t)
    e("L_h_now:")
    e("s_barrier")
    if hlp: e(f"s_waitcnt vmcnt(8)\ns_cmp_lg_u32 s{sPh}, 0\ns_cbranch_scc1 L_h_mb\ns_waitcnt vmcnt(0)\nL_h_mb:")
    dma8("L_h_d2", True)
    if rr:
        assert sched and pk2 and jn and not pb
        e(f"s_waitcnt lgkmcnt(0)\ns_cmp_eq_u32 s91, 0\ns_cbranch_scc1 L_h_norr2\ns_mov_b32 s91, 0")
        e(f"s_sub_i32 s88, s88, s89\ns_sub_i32 s88, {8 - rrk}, s88\ns_mul_i32 s88, s88, {rr}\ns_max_i32 s{sT0}, s84, 0\ns_add_i32 s{sT0}, s{sT0}, s88\ns_min_i32 s{sT0}, s{sT0}, 8")
        e(f"s_sub_i32 s84, s84, {rrd}\ns_cmp_gt_i32 s88, 0\ns_cselect_b32 s84, s{sT0}, s84")
        e(f"s_bitcmp0_b64 s[86:87], s{sIt}\ns_cbranch_scc1 L_h_mask\nL_h_norr2:")
    if sched: e("s_waitcnt lgkmcnt(0)\n" + ("" if pk2 else f"s_mov_b32 s{sRk}, 0\n") + f"s_bitcmp0_b64 s[86:87], s{sIt}\ns_cbranch_scc1 L_h_noctl")
    if rr: e(f"s_mov_b32 s90, s{sT1}\ns_mov_b32 s89, s{sEnd}")
    if hlp and pk2: e("s_waitcnt lgkmcnt(0)"); request()
    e(f"s_waitcnt lgkmcnt(0)\ns_sub_u32 s{sT2}, s{sT2}, s{sEnd}\ns_lshl_b32 s{sT2}, s{sT2}, {4 - lf}\ns_sub_i32 s{sT2}, s{sT2}, {'s93' if rw else 8 - 8//fg}\ns_mov_b32 s{sRk}, s{sT2}")
    e(f"s_mul_i32 s{sT0}, s{sT2}, {ki}\ns_add_i32 s{sInt}, s{sInt}, s{sT0}\ns_min_i32 s{sInt}, s{sInt}, {(off+imax)*8}\ns_max_i32 s{sInt}, s{sInt}, {(off-imax)*8}")
    if eg:
        e(f"s_cmp_ge_u32 s{sIt}, {eg[0]}\ns_cselect_b32 s{sT0}, {eg[1]}, {kp}\ns_cselect_b32 s30, {eg[2]}, {pcap}\ns_cselect_b32 s31, {eg[3]*8}, 0")
        e(f"s_mul_i32 s{sT0}, s{sT2}, s{sT0}\ns_add_i32 s{sT0}, s{sT0}, s{sInt}\ns_add_i32 s{sT0}, s{sT0}, s31\ns_ashr_i32 s{sT0}, s{sT0}, 6\ns_max_i32 s{sT0}, s{sT0}, 0\ns_min_i32 s{sT0}, s{sT0}, s30")
    else:
        e(f"s_mul_i32 s{sT0}, s{sT2}, {kp}\ns_add_i32 s{sT0}, s{sT0}, s{sInt}\ns_ashr_i32 s{sT0}, s{sT0}, 6\ns_max_i32 s{sT0}, s{sT0}, {pmin}\ns_min_i32 s{sT0}, s{sT0}, {pcap}")
    if boost:
        bm = sum(1 << i for i in boost[1])
        e(f"s_mov_b32 s30, {bm}\ns_bitcmp1_b32 s30, s{sIt}\ns_cselect_b32 s30, {boost[0]}, 0\ns_cmp_lt_u32 s{sIt}, 32\ns_cselect_b32 s30, s30, 0")
        if len(boost) > 2: e(f"s_cmp_ge_i32 s{sT2}, {boost[2]}\ns_cselect_b32 s30, s30, 0")
        e(f"s_add_i32 s{sT0}, s{sT0}, s30")
    if ja:
        e(f"s_cmp_ge_i32 s{sT2}, {min(2*jr-7, 8 - 8//fg)}\ns_cselect_b32 s{sEnd}, {ja}, 0\ns_cmp_lt_i32 s{sT2}, 0\ns_cselect_b32 s{sEnd}, {-jb}, s{sEnd}")
        e(f"s_add_i32 s{sMk}, s{sMk}, s{sEnd}\ns_max_i32 s{sMk}, s{sMk}, {-ja*jd}\ns_min_i32 s{sMk}, s{sMk}, {jmax}\ns_max_i32 s{sEnd}, s{sMk}, 0\ns_add_i32 s{sT0}, s{sT0}, s{sEnd}\ns_min_i32 s{sT0}, s{sT0}, 24")
    if jn:
        assert len(LV) == 5
        e(f"s_cmp_le_i32 s{sT2}, {max(2*jnr-7, 8//fg - 8)}\ns_cselect_b32 s{sEnd}, {jn}, 0\ns_cmp_gt_i32 s{sT2}, 0\ns_cselect_b32 s{sEnd}, {-jnb}, s{sEnd}")
        e(f"s_add_i32 s84, s84, s{sEnd}\ns_max_i32 s84, s84, {-jn*jnd}\ns_min_i32 s84, s84, 8")
        if rr: e(f"s_mov_b32 s95, s{sT0}\ns_cmp_le_i32 s{sT2}, {rre}\ns_cselect_b32 s91, 1, 0\nL_h_mask:\ns_mov_b32 s{sT0}, s95")
        e(f"s_max_i32 s{sEnd}, s84, 0\ns_sub_i32 s{sT0}, s{sT0}, s{sEnd}\n" + (f"s_sub_i32 s88, s88, s89\ns_sub_i32 s88, {8 - pbk}, s88\ns_max_i32 s88, s88, 0\ns_mul_i32 s88, s88, {pb}\ns_sub_i32 s{sT0}, s{sT0}, s88\n" if pb else "") + f"s_add_i32 s{sT0}, s{sT0}, 8\ns_min_i32 s{sT0}, s{sT0}, 31\ns_max_i32 s{sT0}, s{sT0}, 0")
    e(f"s_and_b32 s{sT2}, s{sT0}, 7\ns_lshl_b32 s{sT2}, s{sT2}, 3\ns_lshr_b64 s[30:31], s[{sNx}:{sNx+1}], s{sT2}\ns_and_b32 s30, s30, 0xff\ns_add_u32 s30, s30, 1")
    e(f"s_andn2_b32 s{sT0}, s{sT0}, 7\ns_lshl_b32 s{sT2}, s30, s{sT0}\ns_sub_u32 s{sT2}, s{sT2}, 1")
    e(f"v_mov_b32 v{vT}, s{sT2}\nds_write_b32 v{vZ}, v{vT} offset:{L_FLAG}\ns_waitcnt lgkmcnt(0)")
    if sched: e("L_h_noctl:")
    if pprio is not None: e(f"s_setprio {pprio}")
    if "P" in abl: e(f"s_cmp_lt_u32 s{sRed}, 4\ns_cselect_b32 s{sWS+2}, 0, 0x400000")
    e(f"s_cmp_lt_u32 s{sRed}, 4\ns_cbranch_scc1 L_proj\ns_branch L_h_nop")
    e(f"L_h_projret:\nv_add_u32 v{vWa}, 256, v{vWa}")
    if sm: e(f"v_add_u32 v{vWb}, 256, v{vWb}")
    if defer or batchB:
        for k in range(3 * PN): e(f"v_mov_b32 v{vR+k}, v{vR+k+PN}")
        for k in range(PN): e(f"v_mov_b32 v{vR+3*PN+k}, v{vS+k}")
        if batchB:
            e(f"s_cmp_lg_u32 s{sRed}, 3\ns_cbranch_scc1 L_h_nop"); putB()
    elif swp: e(f"s_cmp_eq_u32 s{sRed}, 1\ns_cselect_b32 s{sT0}, 0x80, 0\nv_xor_b32 v{vSt}, 0x10200, v{vSt}\nv_xor_b32 v{vSt}, s{sT0}, v{vSt}")
    else: e(f"v_add_u32 v{vSt}, {512 >> hs}, v{vSt}")
    e("L_h_nop:")
    if pprio is not None: e(f"s_setprio {hprio}")
    e(f"s_cmp_lg_u32 s{sIt}, {PB-1}\ns_cbranch_scc1 L_h_n1")
    if not bflag: pubml()
    e(f"buffer_load_dword v{vRm}, v{vRow}, s[{sWS}:{sWS+3}], 0 offen sc1\nL_h_n1:")
    e(f"s_cmp_lg_u32 s{sIt}, {PB+4}\ns_cbranch_scc1 L_h_n2")
    e(f"L_h_chk:\ns_waitcnt vmcnt(0)\nv_cmp_ne_u32 vcc, 8, v{vRm}\ns_cbranch_vccz L_h_chkok\nbuffer_load_dword v{vRm}, v{vRow}, s[{sWS}:{sWS+3}], 0 offen sc1\ns_branch L_h_chk\nL_h_chkok:")
    assert bflag and lateP
    if defer: calcml(vR+32)
    else: pubml()
    e("L_h_n2:")
    if hlp:
        e(f"v_cmp_ne_u32 vcc, v{vNew}, v{vOld}\nv_mov_b32 v{vOld}, v{vNew}\ns_mov_b32 s30, vcc_lo\ns_mov_b32 exec_hi, 0")
        e(f"L_h_srv:\ns_ff1_i32_b32 s31, s30\ns_cmp_lt_i32 s31, 0\ns_cbranch_scc1 L_h_srvend\ns_bitset0_b32 s30, s31\nv_readlane_b32 s{sT2}, v{vOld}, s31")
        e(f"s_cmp_lt_u32 s31, 16\ns_cselect_b32 s{sD}, s6, s8\ns_cselect_b32 s{sD+1}, s7, s9\ns_cselect_b32 s{sT0}, 8, 24")
        e(f"s_lshr_b32 s{sT1}, s2, 4\ns_add_u32 s{sT0}, s{sT0}, s{sT1}\ns_and_b32 s{sT1}, s{sT2}, 255\ns_cmp_le_u32 s{sT0}, s{sT1}\ns_cbranch_scc1 L_h_srv")
        e(f"s_bfe_u32 s{sT2}, s{sT2}, 0x80008")
        if foreign:
            lo_, p = (0, 16) if "k" in fwhich else (16, 18)
            if "k" in fwhich or "v" in fwhich:
                e(f"s_sub_u32 s{sT0}, s31, {lo_}\ns_cmp_lt_u32 s{sT0}, 16\ns_cselect_b32 s{sT0}, s{sT2}, 255\ns_cmp_lt_u32 s{sT0}, {2*foreign}\ns_cselect_b32 s{sD}, s{p}, s{sD}\ns_cselect_b32 s{sD+1}, s{p+1}, s{sD+1}")
        if hpat: e(f"s_lshl_b32 s{sT0}, s{sT2}, 20")
        else: e(f"s_lshl_b32 s{sT2}, s{sT2}, 20\ns_lshl_b32 s{sT0}, s2, 12\ns_add_u32 s{sT0}, s{sT0}, s{sT2}")
        e(f"buffer_load_dword v{vNmc}, v{vLn}, s[{sD}:{sD+3}], s{sT0} offen\ns_branch L_h_srv\nL_h_srvend:\ns_mov_b64 exec, -1")
        if not pk2:
            e(f"s_cmp_lt_i32 s{sRk}, {8 - 8//fg}\ns_cbranch_scc1 L_h_nopk\ns_cmp_ge_u32 s{sIt}, 35\ns_cbranch_scc1 L_h_nopk")
            if pkj is not None: e(f"s_cmp_lt_i32 s{sMk}, {pkj}\ns_cbranch_scc1 L_h_nopk")
            cp_addr(pd, sT1, sPkB)
            e(f"s_load_dword s{sPk}, s[28:29], s{sT1} glc\nL_h_nopk:")
    if helpat:
        p = 16 if "k" in fwhich else 18
        e(f"s_cmp_lg_u32 s{sIt}, {helpat}\ns_cbranch_scc1 L_h_n5")
        e(f"s_mov_b32 s{sD}, s{p}\ns_mov_b32 s{sD+1}, s{p+1}\nv_lshlrev_b32 v{vT2}, {hstride}, v{vLane}\ns_lshl_b32 s{sT0}, s2, 12")
        if hstride == 7: e("s_mov_b32 exec_hi, 0")
        for r in range(2 * foreign):
            e(f"buffer_load_dword v{vML}, v{vT2}, s[{sD}:{sD+3}], s{sT0} offen\ns_add_u32 s{sT0}, s{sT0}, 0x100000")
        e("s_mov_b64 exec, -1\nL_h_n5:")
    if warm:
        e(f"s_cmp_lg_u32 s{sIt}, {warm}\ns_cbranch_scc1 L_h_n3")
        e(f"s_getpc_b64 s[30:31]\nL_pc:\ns_sub_u32 s30, s30, L_pc-L_vloop\ns_subb_u32 s31, s31, 0\nv_lshlrev_b32 v{vT2}, 7, v{vLane}\nglobal_load_dword v{vRm}, v{vT2}, s[30:31]\nL_h_n3:")
    if rew:
        e(f"s_xor_b32 s{sT0}, s{sIt}, s{sNOff}\ns_and_b32 s{sT0}, s{sT0}, {rew - 1}\ns_cbranch_scc1 L_h_norew")
        e(f"s_getpc_b64 s[30:31]\nL_pc2:\ns_sub_u32 s30, s30, L_pc2-L_k2v\ns_subb_u32 s31, s31, 0\nv_lshlrev_b32 v{vT2}, 7, v{vLane}\nglobal_load_dword v{vNmc}, v{vT2}, s[30:31]")
        e(f"v_add_u32 v{vT2}, 8192, v{vT2}\nv_min_u32 v{vT2}, L_end-L_k2v, v{vT2}\nglobal_load_dword v{vNmc}, v{vT2}, s[30:31]\nL_h_norew:")
    if sched: e(f"s_bitcmp1_b64 s[86:87], s{sIt}\ns_addc_u32 s65, s65, 0")
    e(f"s_add_u32 s{sIt}, s{sIt}, 1\ns_cmp_lt_u32 s{sIt}, {lastfb}\ns_cbranch_scc1 L_h_loop")
    if hml:
        assert rmap == 1
        e(f"s_and_b32 s{sRed}, s2, 1\ns_bfe_u32 s{sT2}, s2, 0x20001\ns_lshl2_add_u32 s{sRed}, s{sRed}, s{sT2}\ns_mul_i32 s{sRed}, s{sRed}, {ROW*64}\ns_add_u32 s{sRed}, s{sRed}, {WS_P}")
        e(f"v_mul_u32_u24 v{vRow}, {ROW}, v{vLane}\ns_mov_b32 s{sCs}, {f32(C_SCALE)}")
    nb_ = 2 * (40 - lastfb)
    for i in range(nb_):
        e("s_barrier")
        if defer == nb_ - i + 1: putB()
    if defer >= 2:
        e("s_waitcnt vmcnt(0)"); putml(vR+32)
    e(f"s_sub_u32 s{sRow}, s{sRow}, {256*ROW}")
    e("s_barrier")
    pubml()
    if defer == 1:
        e(f"s_add_u32 s{sRow}, s{sRow}, {256*ROW}"); putB()
    e("s_barrier")
    if defer == 1:
        e("s_waitcnt vmcnt(0)"); putml(vR+32)
    if hml:
        e(f"buffer_load_dwordx2 {vr(vML, 2)}, v{vRow}, s[{sWS}:{sWS+3}], s{sRed} offen offset:{PLEN} sc1\ns_waitcnt vmcnt(0)")
        mlpoll(); e("s_nop 0"); weights()
        e(f"ds_write_b32 v{vA8}, v{vP0} offset:{L_WT}\ns_waitcnt lgkmcnt(0)\ns_barrier")
    if hst: e("s_branch L_wst")
    e("L_end:\ns_endpgm")
    e(f""".section .rodata,"a"
.p2align 6
.amdhsa_kernel {KN}
  .amdhsa_next_free_vgpr {NV}
  .amdhsa_next_free_sgpr 96
  .amdhsa_accum_offset {NV}
  .amdhsa_group_segment_fixed_size 0
  .amdhsa_kernarg_size 104
  .amdhsa_user_sgpr_count 2
  .amdhsa_user_sgpr_kernarg_segment_ptr 1
  .amdhsa_system_sgpr_workgroup_id_x 1
.end_amdhsa_kernel""")
    txt = "\n".join(x for x in a if x is not None) + "\n"
    if "w" in abl: txt = "\n".join(l for l in txt.split("\n") if not l.endswith(" lds"))
    return txt
if __name__ == "__main__":
    build("k7", gen(stamps=0))
```

```python
import sys, struct
from build import build, KN
REF = "concat_heads__gqa_block_cached__sliding_block_cached__decode.s.ref"
C_SCALE = 0.08838834764831845 * 1.4426950408889634
def f32(x): return "0x%08x" % struct.unpack("<I", struct.pack("<f", x))[0]

def gen(hi=5, lo=3, cut=3, burst=1, pol="nt", wqpol="nt", wopol="nt", stamps=0, final=0, abl="", endhi=1, shi=5,
        pst=0, hst=0, probe=None, x13=1, pre0=8, peel=1, warm=0, phi=12, prepol="", psl=0, lateP=1, warm0=2, trace=0, qsl=0, preread=0, qmode="s", nb=0, bflag=1, mlearly=1, rmap=1, psl2=0, dbgst=0, kp=40, ki=1, off=15, x14=0, imax=64, ep=0, clk=0, foreign=0, fwhich="kv", lv=(3,4,6,9,12), ja=4, jb=6, jr=7, jmax=16, pcap=8, helpat=0, hstride=6, hlp=1, pd=1, pt=7, hcap=16, lastfb=39, pwg=None, xpos=1, lin=1, init2=1, mlfull=1, hprio=0, pprio=None, sprio=1, pb16=1, defer=0, imask=0x55ff, pkj=4, hml=1, hpat=0, opol="nt", sched="0001010101010101010101010101010101011111", dly=None, perm=None, eg=None, boost=None, hx=1, tb=((10,13),(11,),(14,)), jx=(10,11), jn=1, jnr=1, jnb=8, jnd=3, xf=1, pmin=0, sb1=0, sm=1, fg=8, jd=1, pk2=(7,34), wpos=0, dummy=0, dk_="a", dsh=0, rw=2, swp=0, swq=0, batchB=0, rowpad=128, dpoll=0, mbs=0, pb=0, pbr=(5,40), pbe=7, pbk=0, qhalf=0, tramp=0):
    NW = 4
    PLEN = 1024 if pb16 else 2048
    ROW = PLEN + rowpad
    hs = 1 if pb16 else 0
    WS_QC, WS_FB, WS_QX, WS_P = 0, 0x2000, 0x40000, 0x100000
    L_QP = 0
    L_OB, L_LS, L_MX, L_DUP = 0, 2048, 2064, 2304
    L_QT, L_FLAG = 8192, 8704
    L_SC = 9216
    L_WO = 25600
    LDS = L_WO + 131072 + 1024
    a = []; e = a.append
    vT, vKV, vL, vMx = 0, 1, 2, 3
    vQ, vM, vO = 4, 8, 12
    vNmc, vZ, vLane, vT2 = 16, 17, 18, 19
    vS, vB = 20, 28
    vRm, vSA, vP0, vP1 = 44, 45, 46, 47
    vR, vW = 48, 112
    vA8, vA64, vSt, vOw, vRow, vWa, vML = 240, 241, 242, 243, 244, 245, 246
    vN0, vN1, vIx, vWb = 248, 249, 250, 251
    NV = 256 if trace else 252
    vTr, sTr, sTi = 252, 82, 86
    def tr_issue():
        if trace: e(f"s_memrealtime s[{sTr}:{sTr+1}]")
    def tr_put():
        if trace: e(f"s_mov_b32 m0, s{sTi}\ns_bitcmp1_b32 s{sTi}, 6\ns_cbranch_scc1 1f\nv_writelane_b32 v{vTr}, s{sTr}, m0\ns_branch 2f\n1:\nv_writelane_b32 v{vTr+1}, s{sTr}, m0\n2:\ns_add_u32 s{sTi}, s{sTi}, 1")
    def tr():
        if trace: tr_issue(); e("s_waitcnt lgkmcnt(0)"); tr_put()
    def vr(b, n=4): return f"v[{b}:{b+n-1}]"
    ring = lambda i: vR + 4 * i
    Wa = lambda i: vW + 4 * i
    Wb = lambda i: vW + 64 + 4 * i
    sD, sW, sWS = 32, 36, 40
    sWave, sJ, sH, sB, sHalf = 3, 44, 45, 46, 47
    sOff, sOffA, sOffB, sIt, sRed, sPh = 48, 49, 50, 51, 52, 53
    sCs, sRow, sT0, sT1, sT2, sEnd = 54, 55, 56, 57, 58, 59
    sNx, sNOff, sOut = 60, 62, 63
    sLd, sRed2 = 80, 81
    sMk, sInt = 78, 79
    sPk, sPkB, sRq, sReg, sRk = 49, 50, 54, 81, 85
    sSt = 66
    D1, PB, D2, EW = 4, 13, 18, 27
    hdr = open(REF).read().split("; Override launch")[0] if final else ""
    e(hdr + f"; @launch grid=(256,1,1) block=({(NW+1)*64},1,1) lds={LDS}")
    e('.amdgcn_target "amdgcn-amd-amdhsa--gfx950"\n.text')
    e(f".globl {KN}\n.p2align 8\n.type {KN},@function\n{KN}:")
    def hstamp(i):
        if hst: e(f"s_memrealtime s[{sSt+2*i}:{sSt+2*i+1}]")
    def stamp(i):
        if stamps: e(f"s_memrealtime s[{sSt+2*i}:{sSt+2*i+1}]")
    e("s_load_dwordx16 s[4:19], s[0:1], 0")
    e("s_load_dwordx8 s[20:27], s[0:1], 64")
    e("s_load_dwordx2 s[28:29], s[0:1], 96")
    stamp(0)
    e("s_cmpk_ge_u32 s2, 256\ns_cbranch_scc1 L_end")
    if perm: e(f"s_mul_i32 s2, s2, {perm[0]}\ns_add_u32 s2, s2, {perm[1]}\ns_lshr_b32 s3, s2, 3\ns_and_b32 s3, s3, 31\ns_lshl_b32 s2, s2, 5\ns_and_b32 s2, s2, 0xe0\ns_or_b32 s2, s2, s3")
    if dly:
        e(f"s_and_b32 s3, s2, {dly[0]}\ns_cmp_lg_u32 s3, {dly[1]}\ns_cbranch_scc1 L_nodly\ns_memrealtime s[90:91]\ns_waitcnt lgkmcnt(0)")
        e(f"L_dly:\ns_memrealtime s[92:93]\ns_waitcnt lgkmcnt(0)\ns_sub_u32 s3, s92, s90\ns_cmp_lt_u32 s3, {dly[2]*100}\ns_cbranch_scc1 L_dly\nL_nodly:")
    if wpos == 0:
        e(f"s_getpc_b64 s[30:31]\nL_pc:\nv_lshlrev_b32 v{vML+1}, 7, v0\nv_min_u32 v{vML+1}, L_end-L_pc, v{vML+1}\nglobal_load_dword v{vML+1}, v{vML+1}, s[30:31]")
    e(f"v_cmp_le_u32 vcc, 0x100, v0\nv_and_b32 v{vP0}, 7, v0\nv_lshlrev_b32 v{vP0}, 4, v{vP0}\nv_and_b32 v{vT2}, 16, v0")
    e(f"s_and_b32 s{sH}, s2, 7\ns_lshr_b32 s{sT0}, s2, 6\ns_lshl3_add_u32 s{sH}, s{sT0}, s{sH}")
    e(f"s_lshl_b32 s{sW+2}, 1, 22\ns_mov_b32 s{sW+3}, 0x20000")
    e("s_cbranch_vccnz " + ("L_hop1" if tramp else "L_helper"))
    def ids():
        e(f"v_lshrrev_b32 v{vZ}, 6, v0\nv_and_b32 v{vLane}, 63, v0\nv_readfirstlane_b32 s{sWave}, v{vZ}")
        e(f"s_bfe_u32 s{sJ}, s2, 0x30003\ns_lshr_b32 s{sB}, s{sJ}, 1\ns_and_b32 s{sHalf}, s{sJ}, 1")
        e(f"s_mov_b32 s{sD+2}, 0x10000000\ns_mov_b32 s{sD+3}, 0x20000\ns_mov_b32 s{sWS+2}, 0x400000\ns_mov_b32 s{sWS+3}, 0x20000")
        e(f"v_mov_b32 v{vZ}, 0")
        e(f"s_lshl_b32 s{sRow}, s{sB}, 5\ns_add_u32 s{sRow}, s{sRow}, s{sH}\ns_lshl1_add_u32 s{sReg}, s{sRow}, s{sHalf}")
        e(f"s_mul_i32 s{sRow}, s{sReg}, {ROW}\ns_add_u32 s{sRow}, s{sRow}, {WS_P}")
    WS_P2 = 0x200000
    sP = 94
    def swz(v, t):
        e(f"v_lshrrev_b32 v{t}, 2, v{v}\nv_and_b32 v{t}, 0x7f80, v{t}\nv_bfe_i32 v{vNmc}, v{v}, 7, 1\nv_and_b32 v{vNmc}, 0x8180, v{vNmc}\nv_xor_b32 v{t}, v{t}, v{vNmc}")
        e(f"v_bfe_i32 v{vNmc}, v{v}, 8, 1\nv_and_b32 v{vNmc}, 0x10200, v{vNmc}\nv_xor_b32 v{t}, v{t}, v{vNmc}\nv_and_b32 v{v}, 0xfffe007f, v{v}\nv_or_b32 v{v}, v{v}, v{t}")
    def consts(wv):
        e(f"v_and_b32 v{vT}, 1, v{vLane}\nv_lshlrev_b32 v{vT}, 4, v{vT}\nv_mov_b32 v{vT2}, 0xffff\nv_lshlrev_b32 v{vT}, v{vT}, v{vT2}")
        e(f"v_bfe_u32 v{vT2}, v{vLane}, 1, 2")
        for j in range(4):
            e(f"v_cmp_eq_u32 vcc, {j}, v{vT2}\ns_nop 1\nv_cndmask_b32 v{vM+j}, 0, v{vT}, vcc")
    def consts2(wv):
        e(f"v_lshlrev_b32 v{vA8}, 3, v{vLane}")
        e(f"v_lshrrev_b32 v{vT}, 3, v{vLane}\nv_lshlrev_b32 v{vA64}, 6, v{vT}")
        if sm:
            e(f"v_and_b32 v{vT}, 1, v{vT}\nv_lshrrev_b32 v{vT2}, 5, v{vLane}\nv_lshl_add_u32 v{vT}, v{vT2}, 1, v{vT}\nv_mul_u32_u24 v{vWa}, {16384+128}, v{vT}")
            e(f"v_bfe_u32 v{vT}, v{vLane}, 4, 1\nv_lshl_add_u32 v{vWa}, v{vT}, 10, v{vWa}")
            if wv is None: e(f"v_bfe_i32 v{vN1}, v{vLane}, 2, 1\nv_not_b32 v{vN0}, v{vN1}\nv_and_b32 v{vIx}, 3, v{vLane}\nv_mul_u32_u24 v{vIx}, 0x5555, v{vIx}")
            e(f"v_and_b32 v{vT2}, 7, v{vLane}\nv_lshl_add_u32 v{vWa}, v{vT2}, 4, v{vWa}")
        else:
            e(f"v_mul_u32_u24 v{vWa}, {16384+128}, v{vT}\nv_and_b32 v{vT2}, 7, v{vLane}\nv_lshl_add_u32 v{vWa}, v{vT2}, 4, v{vWa}")
        if lin:
            e(f"v_lshlrev_b32 v{vSt}, {4-hs}, v{vT2}\nv_lshrrev_b32 v{vT}, 4, v{vLane}\nv_lshl_add_u32 v{vSt}, v{vT}, {7-hs}, v{vSt}\nv_and_b32 v{vT2}, 16, v{vLane}")
        else:
            e(f"v_lshlrev_b32 v{vSt}, 5, v{vT2}\nv_and_b32 v{vT2}, 16, v{vLane}\nv_add_u32 v{vSt}, v{vSt}, v{vT2}")
            e(f"v_lshrrev_b32 v{vT}, 5, v{vLane}\nv_lshl_add_u32 v{vSt}, v{vT}, 8, v{vSt}")
        if wv is not None:
            e(f"s_lshl_b32 s{sT0}, s{wv}, 8\nv_add_u32 v{vWa}, s{sT0}, v{vWa}")
            e(f"s_lshl_b32 s{sT0}, s{wv}, {9-hs}\nv_add_u32 v{vSt}, s{sT0}, v{vSt}\ns_lshl_b32 s{sT0}, s{wv}, 9")
            e(f"v_and_b32 v{vT}, 15, v{vLane}\nv_lshlrev_b32 v{vT}, 5, v{vT}\nv_add3_u32 v{vOw}, v{vT}, v{vT2}, s{sT0}")
        if sm: e(f"v_add_u32 v{vWb}, {4*(16384+128)}, v{vWa}")
        if swp:
            assert pb16 and lin and not defer
            e(f"s_lshl_b32 s{sT0}, s{sReg}, 10\nv_add_u32 v{vSt}, s{sT0}, v{vSt}\ns_mov_b32 s{sP}, {WS_P2 + (0 if wv is not None else 0x40000)}")
            swz(vSt, vT)
    e(f"v_lshl_add_u32 v{vP0}, v{vT2}, 9, v{vP0}\nv_and_b32 v{vP1}, 0xe8, v0\nv_lshl_add_u32 v{vP0}, v{vP1}, 13, v{vP0}")
    e(f"s_and_b32 s{sT0}, s2, 16\ns_lshl_b32 s{sT1}, s{sT0}, 9\ns_add_u32 s{sT1}, s{sT1}, s{sH}\ns_bitcmp1_b32 s2, 3\ns_addc_u32 s{sT1}, s{sT1}, s{sT1}\ns_lshl_b32 s{sT1}, s{sT1}, 7")
    if wpos == 2:
        e(f"s_getpc_b64 s[30:31]\nL_pc:\nv_lshlrev_b32 v{vML+1}, 7, v0\nv_min_u32 v{vML+1}, L_end-L_pc, v{vML+1}\nglobal_load_dword v{vML+1}, v{vML+1}, s[30:31]")
    e("s_bitcmp0_b32 s2, 5")
    if pst == 4: stamp(1)
    e("s_waitcnt lgkmcnt(0)")
    if pst == 4: stamp(2)
    e(f"s_cselect_b32 s{sW}, s10, s20\ns_cselect_b32 s{sW+1}, s11, s21")
    ops = []
    xr = [vQ, vO, vS, vS+4]
    def wq(t):
        e(f"buffer_load_dwordx4 {vr(ring(8+t))}, v{vP0}, s[{sW}:{sW+3}], s{sT2 if t & 1 else sT1} offen {wqpol}"); ops.append(("w", t))
    wq(0)
    e(f"s_cselect_b32 s30, s4, s14\ns_cselect_b32 s31, s5, s15")
    e(f"s_cselect_b32 s{sNx}, s12, s22\ns_cselect_b32 s{sNx+1}, s13, s23")
    for t in range(1, 8):
        if t == 1: e(f"s_add_u32 s{sT2}, s{sT1}, 0x20000")
        else: e(f"s_addk_i32 s{sT2 if t & 1 else sT1}, 0x4000")
        wq(t)
        if t == xpos:
            e(f"s_lshl_b32 s{sT0}, s{sT0}, 5\nv_lshl_add_u32 v{vP1}, v{vT2}, 2, s{sT0}\nv_and_b32 v{vT2}, 0xc8, v0\nv_lshl_add_u32 v{vP1}, v{vT2}, 1, v{vP1}\nv_and_or_b32 v{vP1}, v0, 32, v{vP1}")
            for bb in range(4):
                e(f"global_load_dwordx4 {vr(xr[bb])}, v{vP1}, s[30:31] offset:{1024*bb}"); ops.append(("x", bb))
    if pst == 2: stamp(1)
    if warm0 == 2 and wpos == 1:
        e(f"s_getpc_b64 s[30:31]\nL_pc:\nv_lshlrev_b32 v{vML+1}, 7, v0\nv_min_u32 v{vML+1}, L_end-L_pc, v{vML+1}\nglobal_load_dword v{vML+1}, v{vML+1}, s[30:31]"); ops.append(("c", 0))
    if tramp: e("s_branch L_ov1\nL_hop1:\ns_branch " + ("L_hop2" if tramp > 1 else "L_helper") + "\nL_ov1:")
    if sprio: e(f"s_setprio {sprio}")
    ids()
    e(f"s_mov_b32 s{sW}, s{sNx}\ns_mov_b32 s{sW+1}, s{sNx+1}")
    assert hml
    vKV1 = vML
    e(f"v_lshlrev_b32 v{vKV}, 4, v{vLane}\nv_bfe_u32 v{vT2}, v{vLane}, 3, 1")
    if hx: e(f"v_xor_b32 v{vT2}, s{sHalf}, v{vT2}")
    e(f"v_mul_u32_u24 v{vT2}, 0x8100, v{vT2}\nv_xor_b32 v{vKV}, v{vKV}, v{vT2}\nv_xor_b32 v{vKV1}, 0x8100, v{vKV}")
    e(f"s_lshl_b32 s{sT2}, s{sWave}, 12")
    for k, bit in enumerate(jx): e(f"s_bfe_u32 s{sT0}, s{sB}, {k | 0x10000}\ns_lshl_b32 s{sT0}, s{sT0}, {bit}\ns_xor_b32 s{sT2}, s{sT2}, s{sT0}")
    assert hx
    e(f"s_and_b32 s{sT0}, s{sB}, 1\ns_lshl1_add_u32 s{sT0}, s{sH}, s{sT0}\ns_lshl_b32 s{sT0}, s{sT0}, 16\ns_add_u32 s{sOff}, s{sT0}, s{sT2}")
    e(f"s_lshl_b32 s{sOffA}, s{sReg}, 20\ns_add_u32 s{sOffA}, s{sOffA}, s{sT2}")
    e(f"s_mul_i32 s{sT0}, s{sHalf}, {(1<<20) - (1<<18)}\ns_sub_u32 s{sOffB}, s{sOffA}, s{sT0}\ns_add_u32 s{sOffB}, s{sOffB}, {6144*256}")
    if foreign:
        e(f"s_lshr_b32 s{sEnd}, s{sOffA}, 21\ns_cmp_lt_u32 s{sEnd}, {foreign}")
        if "k" in fwhich: e("s_cselect_b32 s6, s16, s6\ns_cselect_b32 s7, s17, s7")
        if "v" in fwhich: e("s_cselect_b32 s8, s18, s8\ns_cselect_b32 s9, s19, s9")
        if "K" in fwhich: e("s_cselect_b32 s16, s6, s16\ns_cselect_b32 s17, s7, s17")
        if "V" in fwhich: e("s_cselect_b32 s18, s8, s18\ns_cselect_b32 s19, s9, s19")
    if trace: e(f"s_mov_b32 s{sTi}, 0\nv_mov_b32 v{vTr}, 0\nv_mov_b32 v{vTr+1}, 0"); tr()
    def xc(i):
        c = 0
        for k in range(3):
            if (i >> k) & 1:
                for b in tb[k]: c ^= 1 << b
        return c
    def ld(dst, i, srd=sD, p=pol, pre=None):
        c = xc(i)
        if pre and not xf: pre()
        if c: e(f"s_xor_b32 s{sT1}, s{sOff}, {c}")
        if pre and xf: pre()
        e(f"buffer_load_dwordx4 {vr(dst)}, v{vKV1 if i >= 8 else vKV}, s[{srd}:{srd+3}], s{sT1 if c else sOff} offen {p}")
        if i == 15: e(f"s_add_u32 s{sOff}, s{sOff}, 0x10000")
    kslot = lambda n: (Wa, ring, Wb, Wa)[n >> 4](n & 15)
    def sld(n):
        if n % 8 == 0: tr()
        if n < 8:
            ld(ring(n & 3), n, sW, prepol)
            if n == 7: e(f"s_mov_b32 s{sOff}, s{sOffB}")
        else: ld(kslot(n-8), (n-8) & 15)
    n = 0
    e(f"s_mov_b32 s{sD}, s16\ns_mov_b32 s{sD+1}, s17")
    while n < pre0:
        if n == 2 and tramp > 1: e("s_branch L_ov2\nL_hop2:\ns_branch L_helper\nL_ov2:")
        sld(n); n += 1
    e(f"s_mov_b32 s{sWS}, s28\ns_mov_b32 s{sWS+1}, s29")
    qk = [vA8, vA64, vSt, vOw]
    e(f"v_bfe_i32 v{vN1}, v{vLane}, 2, 1\nv_not_b32 v{vN0}, v{vN1}\nv_and_b32 v{vIx}, 3, v{vLane}\nv_mul_u32_u24 v{vIx}, 0x5555, v{vIx}")
    e(f"v_lshrrev_b32 v{qk[0]}, 16, v{vN0}\nv_lshrrev_b32 v{qk[1]}, 16, v{vN1}\nv_lshlrev_b32 v{qk[2]}, 16, v{vN0}\nv_lshlrev_b32 v{qk[3]}, 16, v{vN1}")
    e(f"s_mov_b32 s{sCs}, {f32(C_SCALE)}")
    for j in range(16): e(f"v_mov_b32 v{vB+j}, 0")
    after = lambda op: len(ops) - 1 - ops.index(op)
    e(f"s_waitcnt vmcnt({after(('x', 3)) + n})")
    for u in range(4):
        for bb in range(4):
            for r in range(4): e(f"v_and_b32 v{Wb(4*u+bb)+r}, v{xr[bb]+u}, v{qk[r]}")
    nlab = [0]
    LV = lv or (lo, hi)
    def thr(bit, n=None):
        if n is not None: e(f"s_waitcnt vmcnt({n})"); return
        nlab[0] += 1
        if LV[-1] < 12: e(f"s_waitcnt vmcnt({LV[-1]})")
        for k in range(len(LV) - 2, -1, -1):
            if len(LV) == 5 and k == 1:
                e(f"s_bitcmp1_b32 s{sMk}, {bit + 8}\ns_cbranch_scc1 L_t{nlab[0]}\ns_bitcmp1_b32 s{sMk}, {bit}\ns_cbranch_scc1 L_u{nlab[0]}\ns_waitcnt vmcnt({LV[0]})\nL_u{nlab[0]}:\ns_waitcnt vmcnt({LV[1]})")
                break
            e(f"s_bitcmp1_b32 s{sMk}, {bit + 8*k}\ns_cbranch_scc1 L_t{nlab[0]}\ns_waitcnt vmcnt({LV[k]})")
        e(f"L_t{nlab[0]}:")
    def pair(r, free=False):
        if burst == 2:
            thr(r >> 1, phi if free else None)
            ld(ring(r), r); ld(ring(r+1), r+1)
        else:
            for k in range(2):
                ld(ring(r+k), r+k, pre=lambda: thr((r + k) & 7, phi if free else None))
    for u in range(4):
        t = 2*u + 1
        while shi > after(("w", t)) + n - 1:
            e(f"s_waitcnt vmcnt({shi})"); sld(n); sld(n+1); n += 2
        e(f"s_waitcnt vmcnt({after(('w', t)) + n})")
        for bb in range(4): e(f"v_smfmac_f32_16x16x64_bf16 {vr(vB+4*bb)}, {vr(Wb(4*u+bb))}, {vr(ring(8+2*u), 8)}, v{vIx}")
    e(f"v_and_b32 v{vT}, 7, v{vLane}\nv_lshlrev_b32 v{vT}, 5, v{vT}\nv_and_or_b32 v{vT}, v{vLane}, 16, v{vT}")
    e(f"v_lshrrev_b32 v{vT2}, 5, v{vLane}\nv_lshl_add_u32 v{vT}, v{vT2}, 10, v{vT}")
    e(f"s_lshl_b32 s{sT0}, s{sWave}, 11\nv_add_u32 v{vT}, s{sT0}, v{vT}")
    e("s_mov_b32 exec_lo, 0x00ff00ff\ns_mov_b32 exec_hi, 0xff00ff00")
    for bb in range(4): e(f"ds_write_b128 v{vT}, {vr(vB+4*bb)} offset:{L_QP + 256*bb}")
    e("s_mov_b64 exec, -1")
    e("s_waitcnt lgkmcnt(0)\ns_barrier")
    if pst == 2: stamp(2)
    first = 0
    while n < 56:
        if n == nb: e("s_barrier")
        thr(0, shi); sld(n)
        if sb1: thr(0, shi)
        sld(n+1); n += 2
        first += 1
        if first == 2: consts2(sWave)
        if first == 3: consts(sWave)
        if first == 4:
            e(f"s_lshl_b32 s{sLd}, s{sWave}, 12\nv_and_b32 v{vSA}, 60, v{vLane}\nv_add_u32 v{vSA}, s{sLd}, v{vSA}")
            e(f"v_mov_b32 v{vRm}, 0xff7fffff")
            if rmap == 0:
                e(f"s_mov_b32 s{sOut}, s{sJ}")
                e(f"s_and_b32 s{sT0}, s2, 7\ns_lshl_b32 s{sT0}, s{sT0}, 2\ns_lshr_b32 s{sT2}, s2, 6\ns_add_u32 s{sT0}, s{sT0}, s{sT2}")
            else:
                e(f"s_and_b32 s{sOut}, s2, 7\ns_lshr_b32 s{sT0}, s2, 3")
            e(f"s_and_b32 s{sRed}, s{sOut}, 1\ns_lshl_b32 s{sRed}, s{sRed}, 2\ns_lshr_b32 s{sT2}, s{sOut}, 1\ns_add_u32 s{sRed}, s{sRed}, s{sT2}\ns_mul_i32 s{sRed}, s{sRed}, {ROW*64}\ns_add_u32 s{sRed}, s{sRed}, {WS_P}")
            e(f"s_lshl_b32 s{sT0}, s{sT0}, 2\ns_add_u32 s{sT0}, s{sT0}, s{sWave}")
            if swp:
                e(f"s_lshr_b32 s{sT2}, s{sOut}, 1\ns_lshl_b32 s{sT2}, s{sT2}, 16\ns_lshl3_add_u32 s{sT2}, s{sT0}, s{sT2}\nv_lshl_add_u32 v{vRow}, v{vLane}, 10, s{sT2}")
                swz(vRow, vT)
                e(f"s_and_b32 s{sRed2}, s{sOut}, 1\ns_lshl_b32 s{sRed2}, s{sRed2}, 18\ns_add_u32 s{sRed2}, s{sRed2}, {WS_P2}")
            else: e(f"s_lshl_b32 s{sT2}, s{sT0}, {4-hs}\ns_add_u32 s{sRed2}, s{sRed}, s{sT2}")
            if lin:
                e(f"s_and_b32 s{sT2}, s{sT0}, 7\ns_bfe_u32 s{sEnd}, s{sT0}, 0x10003\ns_lshl1_add_u32 s{sT2}, s{sT2}, s{sEnd}\ns_andn2_b32 s{sT0}, s{sT0}, 15\ns_add_u32 s{sT0}, s{sT0}, s{sT2}")
            e(f"s_lshl_b32 s{sT0}, s{sT0}, 3\ns_lshl_b32 s{sOut}, s{sOut}, 10\ns_add_u32 s{sOut}, s{sOut}, s{sT0}")
            if not swp: e(f"v_mul_u32_u24 v{vRow}, {ROW}, v{vLane}")
    e(f"v_and_b32 v{vT2}, 15, v{vLane}\nv_lshlrev_b32 v{vT2}, 4, v{vT2}")
    if not pst: stamp(1)
    e("s_barrier")
    e(f"ds_read_b128 {vr(vQ)}, v{vT2} offset:{L_QT+256}")
    dpp = lambda ctl, bank=0xf: f"{ctl} row_mask:0xf bank_mask:{hex(bank)}"
    def rdflag(): tr_issue(); e(f"ds_read_b32 v{vT}, v{vZ} offset:{L_FLAG}")
    def useflag(): e(f"s_waitcnt lgkmcnt(0)\nv_readfirstlane_b32 s{sMk}, v{vT}"); tr_put()
    def dots(regs, sb):
        for j in range(4):
            for t in range(4):
                e(f"v_dot2_f32_bf16 v{sb+t}, v{regs[t]+j}, v{vQ+j}, {'0' if j == 0 else 'v%d' % (sb+t)}")
    def kdst(st, g): return vS + 4*g if st == 0 else vB + 4*g
    def red(st, g, off):
        if st == 0: return
        a_, b_ = vS + 4*g, vB + 4*g
        for t in range(4): e(f"v_add_f32_dpp v{a_+t}, v{b_+t}, v{a_+t} {dpp('row_ror:8')}")
        e(f"v_add_f32_dpp v{a_}, v{a_}, v{a_} {dpp('row_half_mirror', 0x5)}")
        e(f"v_add_f32_dpp v{a_}, v{a_+1}, v{a_+1} {dpp('row_half_mirror', 0xa)}")
        e(f"v_add_f32_dpp v{a_+2}, v{a_+2}, v{a_+2} {dpp('row_half_mirror', 0x5)}")
        e(f"v_add_f32_dpp v{a_+2}, v{a_+3}, v{a_+3} {dpp('row_half_mirror', 0xa)}")
        for qp in ("[1,0,3,2]", "[2,3,0,1]"):
            e(f"v_add_f32_dpp v{a_}, v{a_}, v{a_} {dpp('quad_perm:' + qp)}\ns_nop 0")
            e(f"v_add_f32_dpp v{a_+2}, v{a_+2}, v{a_+2} {dpp('quad_perm:' + qp)}")
        e(f"ds_write_b32 v{vSA}, v{a_} offset:{L_SC + off + 128*g}")
        e(f"v_max3_f32 v{vRm}, v{vRm}, v{a_}, v{a_+2}")
        e(f"ds_write_b32 v{vSA}, v{a_+2} offset:{L_SC + off + 128*g + 64}")
    def wavered(x, op, tmp):
        e(f"v_{op}_f32_dpp v{x}, v{x}, v{x} {dpp('row_ror:4')}\ns_nop 1")
        e(f"v_{op}_f32_dpp v{x}, v{x}, v{x} {dpp('row_ror:8')}")
        e(f"v_mov_b32 v{tmp}, v{x}\ns_nop 1")
        e(f"v_permlane16_swap_b32 v{x}, v{tmp}\ns_nop 1")
        e(f"v_{op}_f32 v{x}, v{x}, v{tmp}")
        e(f"v_mov_b32 v{tmp}, v{x}\ns_nop 1")
        e(f"v_permlane32_swap_b32 v{x}, v{tmp}\ns_nop 1")
        e(f"v_{op}_f32 v{x}, v{x}, v{tmp}")
    for i in range(16):
        if i % 4 == 0:
            if i: e("s_barrier")
            rdflag(); useflag()
        if i == 0 and not pst: stamp(2)
        if i == 8: e(f"s_mov_b32 s{sD}, s18\ns_mov_b32 s{sD+1}, s19\ns_mov_b32 s{sOff}, s{sOffB}")
        e("s_waitcnt vmcnt(12)")
        dots([kslot(4*i+t) for t in range(4)], kdst((i >> 1) & 1, i & 1))
        for k in range(2):
            if burst == 1: thr((2*i + k) & 7)
            elif k == 0: thr(i & 7)
            m = 2 * i + k
            ld(Wa(m) if i < 8 else ring(m - 16), m & 15)
        red((i >> 1) & 1, i & 1, 256 * (i >> 2))
    e(f"s_mov_b32 s{sIt}, 4\ns_mov_b32 s{sEnd}, 8\ns_mov_b32 s{sPh}, 0")
    e(f"s_mov_b32 s{sNx}, s6\ns_mov_b32 s{sNx+1}, s7\ns_mov_b32 s{sNOff}, s{sOffA}")
    s0, s1, s2_, s3 = vS, vS+1, vS+2, vS+3
    e("L_k2v:")
    e(f"s_lshl_b32 s{sT0}, s{sWave}, 2\nv_mov_b32 v{vT2}, s{sT0}")
    wavered(vRm, "max", s0)
    e(f"ds_write_b32 v{vT2}, v{vRm} offset:{L_MX}")
    e(f"v_and_b32 v{vSA}, 60, v{vLane}\nv_add_u32 v{vSA}, s{sLd}, v{vSA}\nv_mov_b32 v{vL}, 0")
    for j in range(4): e(f"v_mov_b32 v{vO+j}, 0")
    e(f"s_add_u32 s{sIt}, s{sIt}, 1")
    e("s_waitcnt lgkmcnt(0)\ns_barrier")
    e(f"ds_read_b128 {vr(vS)}, v{vZ} offset:{L_MX}\ns_waitcnt lgkmcnt(0)")
    e(f"v_max3_f32 v{vMx}, v{s0}, v{s1}, v{s2_}\nv_max_f32 v{vMx}, v{vMx}, v{s3}")
    e(f"v_mul_f32 v{vNmc}, s{sCs}, v{vMx}\nv_sub_f32 v{vNmc}, 0, v{vNmc}")
    e("s_branch L_vnobar")
    def soft(p):
        e(f"v_fma_f32 v{p}, v{p}, s{sCs}, v{vNmc}")
        e(f"v_exp_f32 v{p}, v{p}")
    pr = [vS+4, vS+5, vS+6, vS+7]
    def ands(g):
        for t in range(4):
            p = pr[2*g + (t >> 1)]
            for j in range(4):
                if (j >> 1) == (t & 1): e(f"v_and_b32 v{vB+4*t+j}, v{p}, v{vM+j}")
                else: e(f"v_and_b32_dpp v{vB+4*t+j}, v{p}, v{vM+j} {dpp('row_half_mirror')}")
    def rdsc():
        for r in range(4): e(f"ds_read_b32 v{pr[r]}, v{vSA} offset:{L_SC + 64*r}")
    def soft4():
        for r in range(4): soft(pr[r])
        for r in range(4): e(f"v_add_f32 v{vL}, v{vL}, v{pr[r]}")
        for r in range(4): e(f"v_cvt_pk_bf16_f32 v{pr[r]}, v{pr[r]}, v{pr[r]}")
    def flip():
        for r in range(4): e(f"v_mov_b32_dpp v{pr[r]}, v{pr[r]} {dpp('row_ror:8')}")
    def pv(r0, ts):
        for t in ts: e(f"v_mfma_f32_16x16x32_bf16 {vr(vO)}, {vr(vB+4*t)}, {vr(ring(r0+t))}, {vr(vO)}")
    def switch():
        e(f"s_add_u32 s{sIt}, s{sIt}, 1\ns_cmp_eq_u32 s{sIt}, s{sEnd}")
        e(f"s_cselect_b32 s{sD}, s{sNx}, s{sD}\ns_cselect_b32 s{sD+1}, s{sNx+1}, s{sD+1}\ns_cselect_b32 s{sOff}, s{sNOff}, s{sOff}")
    def vstep(st, lab=None, free=False):
        e("s_barrier")
        if lab: e(lab)
        rdflag()
        if st == 0: rdsc()
        else: flip()
        useflag()
        if st == 0: soft4()
        for g in range(2):
            r0 = 8 * st + 4 * g
            ands(g)
            e("s_waitcnt vmcnt(12)")
            pv(r0, range(4))
            pair(r0, free); pair(r0+2, free)
    e(".p2align 6\nL_vloop:")
    e(f"s_sub_u32 s{sT0}, s{sIt}, {EW}\ns_cmp_lt_u32 s{sT0}, 8\ns_cbranch_scc1 L_wpiece\nL_vret:")
    switch()
    vstep(0, "L_vnobar:")
    if peel: e(f"s_cmp_eq_u32 s{sIt}, 39\ns_cbranch_scc1 L_peel")
    vstep(1)
    e(f"v_add_u32 v{vSA}, 256, v{vSA}")
    e(f"s_cmp_lt_u32 s{sIt}, s{sEnd}\ns_cbranch_scc1 L_vloop")
    if peel:
        e("s_branch L_v2k\nL_peel:")
        vstep(1, None, True)
        e(f"v_add_u32 v{vSA}, 256, v{vSA}")
    else:
        e(f"s_cmp_eq_u32 s{sPh}, 0\ns_cbranch_scc1 L_v2k")
    e("L_drain:")
    tr()
    rdsc()
    e(f"s_lshl_b32 s{sT0}, s{sWave}, 2\nv_mov_b32 v{vT2}, s{sT0}")
    e("s_waitcnt lgkmcnt(0)")
    soft4()
    wavered(vL, "add", s0)
    e(f"ds_write_b32 v{vT2}, v{vL} offset:{L_LS}")
    e("s_waitcnt lgkmcnt(0)\ns_barrier")
    for g in range(4):
        if g == 2: flip()
        ands(g & 1)
        for t in range(4):
            e(f"s_waitcnt vmcnt({15 - 4*g - t})"); pv(4*g, [t])
    stamp(3)
    if clk: e(f"s_memtime s[{sSt+2}:{sSt+3}]")
    if mlearly and "e" not in abl and not hml: e(f"buffer_load_dwordx2 {vr(vML, 2)}, v{vRow}, s[{sWS}:{sWS+3}], s{sRed} offen offset:{PLEN} sc1")
    else: e("s_nop 0")
    e("s_mov_b32 exec_lo, 0x00ff00ff\ns_mov_b32 exec_hi, 0xff00ff00\ns_nop 4")
    e(f"ds_write_b128 v{vOw}, {vr(vO)} offset:{L_OB}")
    e("s_mov_b64 exec, -1")
    e("s_waitcnt lgkmcnt(0)\ns_barrier")
    e("L_proj:")
    for w in range(4): e(f"ds_read_b64 {vr(vB+2*w, 2)}, v{vA8} offset:{L_OB + w*512}")
    e("s_waitcnt lgkmcnt(2)")
    e(f"v_add_f32 v{vB}, v{vB}, v{vB+2}\nv_add_f32 v{vB+1}, v{vB+1}, v{vB+3}")
    e("s_waitcnt lgkmcnt(0)")
    e(f"v_add_f32 v{vB+4}, v{vB+4}, v{vB+6}\nv_add_f32 v{vB+5}, v{vB+5}, v{vB+7}")
    e(f"v_add_f32 v{vB}, v{vB}, v{vB+4}\nv_add_f32 v{vB+1}, v{vB+1}, v{vB+5}")
    if sm: e(f"v_cvt_pk_bf16_f32 v{vP0}, v{vB}, 0\nv_cvt_pk_bf16_f32 v{vP1}, v{vB+1}, 0")
    else: e(f"v_cvt_pk_bf16_f32 v{vP0}, v{vB}, v{vB}\nv_cvt_pk_bf16_f32 v{vP1}, v{vB+1}, v{vB+1}")
    e(f"ds_write_b64 v{vA8}, {vr(vP0, 2)} offset:{L_DUP}")
    val = [vB+8, vB+12, vQ, vO]
    for u in range(4): e(f"ds_read_b128 {vr(val[u])}, v{vA64} offset:{L_DUP + 16*u}")
    def om(t):
        bp = vB + 4 * (t & 1)
        for cb in range(2):
            src = "0" if t == 0 else vr(vS+4*cb)
            e(f"v_mfma_f32_16x16x32_bf16 {vr(vS+4*cb)}, {vr(bp)}, {vr(vW+4*(2*t+cb))}, {src}")
    if sm:
        def sp(u):
            for cb in range(2): e(f"v_smfmac_f32_16x16x64_bf16 {vr(vS+4*cb)}, {vr(vB+4*(u&1))}, {vr(vW+8*(2*u+cb), 8)}, v{vIx}")
        for j in range(8): e(f"v_mov_b32 v{vS+j}, 0")
        for u in range(8):
            if u % 2 == 0: e(f"s_waitcnt lgkmcnt({3 - u//2})")
            for r in range(4): e(f"v_and_b32 v{vB+4*(u&1)+r}, v{val[u>>1] + 2*(u&1) + (r>>1)}, v{(vN0, vN1)[r&1]}")
            if u > 0: sp(u-1)
        sp(7)
    else:
        for t in range(16):
            if t % 4 == 0: e(f"s_waitcnt lgkmcnt({3 - t//4})")
            bs = vB + 4 * (t & 1)
            for j in range(4): e(f"v_and_b32 v{bs+j}, v{val[t>>2] + (t&3)}, v{vM+j}")
            if t > 0: om(t-1)
        om(15)
    e("s_nop 7")
    for j in range(4): e(f"v_permlane32_swap_b32 v{vS+j}, v{vS+4+j}")
    for j in range(4): e(f"v_add_f32_dpp v{vS+j}, v{vS+4+j}, v{vS+j} {dpp('row_ror:8')}")
    if pb16:
        e(f"v_cvt_pk_bf16_f32 v{vS}, v{vS}, v{vS+1}\nv_cvt_pk_bf16_f32 v{vS+1}, v{vS+2}, v{vS+3}")
        e(f"v_min_u32 v{vS}, -2, v{vS}\nv_min_u32 v{vS+1}, -2, v{vS+1}")
    else:
        for j in range(4): e(f"v_and_b32 v{vS+j}, -2, v{vS+j}")
    if defer or batchB: e(f"s_cmp_eq_u32 s{sWave}, {NW}\ns_cbranch_scc1 L_h_projret")
    e("s_mov_b32 exec_lo, 0x00ff00ff\ns_mov_b32 exec_hi, 0x00ff00ff")
    PW = "dwordx2" if pb16 else "dwordx4"; PN = 2 if pb16 else 4
    e(f"buffer_store_{PW} {vr(vS, PN)}, v{vSt}, s[{sWS}:{sWS+3}], s{sP if swp else sRow} offen sc1")
    e("s_mov_b64 exec, -1")
    if not (defer or batchB): e(f"s_cmp_eq_u32 s{sWave}, {NW}\ns_cbranch_scc1 L_h_projret")
    stamp(4)
    if clk: e(f"s_memtime s[{sSt+4}:{sSt+5}]\ns_waitcnt lgkmcnt(0)\ns_sub_u32 s{sIt}, s{sSt+4}, s{sSt+2}\ns_mov_b64 s[{sSt+2}:{sSt+3}], s[{sSt+6}:{sSt+7}]\ns_mov_b64 s[{sSt+4}:{sSt+5}], s[{sSt+8}:{sSt+9}]")
    if "e" in abl: e("s_branch L_done")
    if "B" in abl: e("s_bitcmp1_b32 s2, 0\ns_cbranch_scc1 L_done")
    if "A" in abl: e("s_bitcmp0_b32 s2, 0\ns_cbranch_scc1 L_done")
    L_WT = 2816
    def mlpoll():
        e("L_pollml:")
        e(f"v_or_b32 v{vT}, v{vML}, v{vML+1}\nv_and_b32 v{vT}, 1, v{vT}\nv_cmp_eq_u32 vcc, 1, v{vT}")
        e("s_and_b64 exec, exec, vcc\ns_cbranch_scc0 L_mlok")
        if psl: e(f"s_sleep {psl}")
        e(f"buffer_load_dwordx2 {vr(vML, 2)}, v{vRow}, s[{sWS}:{sWS+3}], s{sRed} offen offset:{PLEN} sc1")
        e("s_waitcnt vmcnt(0)\ns_branch L_pollml")
        e("L_mlok:\ns_mov_b64 exec, -1")
    def weights():
        e(f"v_max_f32_dpp v{vP0}, v{vML+1}, v{vML+1} {dpp('quad_perm:[1,0,3,2]')}")
        e(f"v_sub_f32 v{vP0}, v{vML+1}, v{vP0}\nv_mul_f32 v{vP0}, s{sCs}, v{vP0}\nv_exp_f32 v{vP0}, v{vP0}\ns_nop 0")
        e(f"v_mul_f32 v{vP1}, v{vP0}, v{vML}\ns_nop 1")
        e(f"v_add_f32_dpp v{vP1}, v{vP1}, v{vP1} {dpp('quad_perm:[1,0,3,2]')}")
        e(f"v_rcp_f32 v{vP1}, v{vP1}\ns_nop 0")
        e(f"v_mul_f32 v{vP0}, v{vP0}, v{vP1}")
    if hml:
        e("s_barrier")
        e(f"buffer_load_{PW} {vr(vB+4 if dpoll else vB, PN)}, v{vRow}, s[{sWS}:{sWS+3}], s{sRed2} offen sc1")
        e(f"ds_read_b32 v{vP0}, v{vA8} offset:{L_WT}")
        e(f"v_lshrrev_b32 v{vT2}, 3, v{vLane}\nv_add_u32 v{vT2}, s{sOut}, v{vT2}\ns_waitcnt lgkmcnt(0)")
    else:
        if not mlearly: e(f"buffer_load_dwordx2 {vr(vML, 2)}, v{vRow}, s[{sWS}:{sWS+3}], s{sRed} offen offset:{PLEN} sc1\ns_waitcnt vmcnt(0)")
        e("s_waitcnt vmcnt(1)")
        mlpoll()
        e(f"buffer_load_{PW} {vr(vB, PN)}, v{vRow}, s[{sWS}:{sWS+3}], s{sRed2} offen sc1")
        e(f"v_lshrrev_b32 v{vT2}, 3, v{vLane}\nv_add_u32 v{vT2}, s{sOut}, v{vT2}")
        weights()
    PLD = f"buffer_load_{PW} {vr(vB+4 if dpoll else vB, PN)}, v{vRow}, s[{sWS}:{sWS+3}], s{sRed2} offen sc1"
    if dpoll:
        assert pb16 and hml
        e("s_waitcnt vmcnt(0)")
        e(f"v_max_u32 v{vT}, v{vB+4}, v{vB+5}\nv_cmp_eq_u32 vcc, -1, v{vT}\ns_and_b64 exec, exec, vcc\ns_cbranch_scc0 L_pok")
        e(PLD)
        e(f"L_poll:\ns_sleep {dpoll}\n" + PLD + "\ns_waitcnt vmcnt(1)")
        e(f"v_max_u32 v{vT}, v{vB+4}, v{vB+5}\nv_cmp_eq_u32 vcc, -1, v{vT}\ns_and_b64 exec, exec, vcc\ns_cbranch_scc1 L_poll")
        e("L_pok:\ns_mov_b64 exec, -1")
        e(f"v_and_b32 v{vB+3}, 0xffff0000, v{vB+5}\nv_lshlrev_b32 v{vB+2}, 16, v{vB+5}\nv_and_b32 v{vB+1}, 0xffff0000, v{vB+4}\nv_lshlrev_b32 v{vB}, 16, v{vB+4}")
    else:
        e("L_poll:\ns_waitcnt vmcnt(0)")
        if pb16: e(f"v_max_u32 v{vT}, v{vB}, v{vB+1}\nv_cmp_eq_u32 vcc, -1, v{vT}")
        else: e(f"v_or3_b32 v{vT}, v{vB}, v{vB+1}, v{vB+2}\nv_or_b32 v{vT}, v{vT}, v{vB+3}\nv_and_b32 v{vT}, 1, v{vT}\nv_cmp_eq_u32 vcc, 1, v{vT}")
        e("s_and_b64 exec, exec, vcc\ns_cbranch_scc0 L_pok")
        if psl2: e(f"s_sleep {psl2}")
        e(PLD)
        e("s_branch L_poll")
        e("L_pok:\ns_mov_b64 exec, -1")
        if pb16:
            e(f"v_and_b32 v{vB+3}, 0xffff0000, v{vB+1}\nv_lshlrev_b32 v{vB+2}, 16, v{vB+1}\nv_and_b32 v{vB+1}, 0xffff0000, v{vB}\nv_lshlrev_b32 v{vB}, 16, v{vB}")
    for j in range(4): e(f"v_mul_f32 v{vB+j}, v{vB+j}, v{vP0}")
    e("s_nop 0")
    e(f"v_permlane16_swap_b32 v{vB}, v{vB+1}\nv_permlane16_swap_b32 v{vB+2}, v{vB+3}\ns_nop 0")
    e(f"v_add_f32 v{vB}, v{vB}, v{vB+1}\nv_add_f32 v{vB+2}, v{vB+2}, v{vB+3}\ns_nop 1")
    e(f"v_permlane32_swap_b32 v{vB}, v{vB+2}\ns_nop 1")
    e(f"v_add_f32 v{vB}, v{vB}, v{vB+2}\ns_nop 1")
    for ctl in ("row_ror:8", "row_ror:4", "row_ror:2"):
        e(f"v_add_f32_dpp v{vB}, v{vB}, v{vB} {dpp(ctl)}\ns_nop 1")
    e(f"v_add_f32_dpp v{vB}, v{vB}, v{vB} {dpp('row_ror:1')}")
    e(f"v_cvt_pk_bf16_f32 v{vB}, v{vB}, v{vB}")
    e("s_mov_b32 exec_lo, 0x00010001\ns_mov_b32 exec_hi, 0x00010001")
    e(f"global_store_short v{vT2}, v{vB}, s[24:25] {opol}")
    e("L_done:")
    if dbgst:
        stamp(5)
        e(f"s_cmp_lg_u32 s{sWave}, 0\ns_cbranch_scc1 L_end\ns_cmp_lg_u32 s2, 36\ns_cbranch_scc1 L_end\ns_waitcnt lgkmcnt(0)\ns_mov_b64 exec, 1")
        for i in range(1, 6): e(f"s_sub_u32 s{sT0}, s{sSt+2*i}, s{sSt}\nv_mov_b32 v{vT}, s{sT0}\nglobal_store_dword v{vZ}, v{vT}, s[26:27] offset:{4*i}")
        for i, r in enumerate([6, 8, 16, 18, 28]): e(f"s_lshr_b32 s{sT0}, s{r}, 21\ns_lshl_b32 s{sT1}, s{r+1}, 11\ns_or_b32 s{sT0}, s{sT0}, s{sT1}\ns_and_b32 s{sT0}, s{sT0}, 0xffff\nv_mov_b32 v{vT}, s{sT0}\nglobal_store_dword v{vZ}, v{vT}, s[26:27] offset:{32+4*i}")
    elif probe is not None:
        stamp(5)
        if pwg is not None: e(f"s_cmp_lg_u32 s2, {pwg}\ns_cbranch_scc1 L_end\ns_cmp_lg_u32 s{sWave}, 0\ns_cbranch_scc1 L_end")
        e("s_waitcnt lgkmcnt(0)")
        e(f"s_sub_u32 s{sT0}, s{sSt+2*probe}, s{sSt}\ns_add_u32 s{sT0}, s{sT0}, 15000")
        e(f"L_spin:\ns_sleep 2\ns_memrealtime s[62:63]\ns_waitcnt lgkmcnt(0)\ns_sub_u32 s{sT1}, s62, s{sSt}\ns_cmp_lt_u32 s{sT1}, s{sT0}\ns_cbranch_scc1 L_spin")
    elif stamps:
        stamp(5)
        e(f"s_cmp_lg_u32 s{sWave}, {4 if hst else 0}\ns_cbranch_scc1 L_end\nL_wst:")
        e("s_waitcnt lgkmcnt(0)")
        e("s_mov_b64 exec, 1\ns_add_u32 s28, s28, 0x20000000\ns_addc_u32 s29, s29, 0")
        e(f"s_lshl_b32 s{sT0}, s2, 6\nv_mov_b32 v{vT}, s{sT0}\ns_getreg_b32 s{sT0}, hwreg(HW_REG_XCC_ID)")
        for i in range(12): e(f"v_mov_b32 v{vR+i}, s{sSt+i}")
        e(f"v_mov_b32 v{vR+12}, s{sIt}\nv_mov_b32 v{vR+13}, 0\nv_mov_b32 v{vR+14}, s{sT0}\nv_mov_b32 v{vR+15}, 0")
        for i in range(4): e(f"global_store_dwordx4 v{vT}, {vr(vR+4*i)}, s[28:29] offset:{16*i}")
        if trace:
            e(f"s_mov_b64 exec, -1\ns_lshl_b32 s{sT0}, s2, 9\ns_add_u32 s{sT0}, s{sT0}, 0x800000\nv_lshl_add_u32 v{vT2}, v{vLane}, 2, s{sT0}")
            e(f"global_store_dword v{vT2}, v{vTr}, s[28:29]\nglobal_store_dword v{vT2}, v{vTr+1}, s[28:29] offset:256")
    e("s_endpgm")
    e("L_tail_end:")
    def wread(t):
        for cb in range(2):
            if sm: e(f"ds_read_b128 {vr(vW+8*(2*(t>>1)+cb)+4*(t&1))}, v{vWb if t & 1 else vWa} offset:{L_WO + (t>>1)*2048 + cb*128}")
            else: e(f"ds_read_b128 {vr(vW+4*(2*t+cb))}, v{vWa} offset:{L_WO + t*1024 + cb*128}")
    e("L_wpiece:")
    for p in range(8):
        if p < 7: e(f"s_cmp_lg_u32 s{sT0}, {p}\ns_cbranch_scc1 L_wp{p+1}")
        wread(2*p); wread(2*p+1)
        e("s_branch L_vret")
        if p < 7: e(f"L_wp{p+1}:")
    e("L_v2k:")
    if pst == 1: stamp(1)
    e(f"v_and_b32 v{vT2}, 15, v{vLane}\nv_lshlrev_b32 v{vT2}, 4, v{vT2}")
    e(f"ds_read_b128 {vr(vQ)}, v{vT2} offset:{L_QT}")
    e(f"s_mov_b32 s{sPh}, 1\ns_mov_b32 s{sEnd}, 24")
    e(f"s_mov_b32 s{sNx}, s8\ns_mov_b32 s{sNx+1}, s9")
    e(f"v_mov_b32 v{vRm}, 0xff7fffff\nv_subrev_u32 v{vSA}, 1024, v{vSA}")
    e(f"s_lshl_b32 s{sT0}, s{sWave}, 2\nv_mov_b32 v{vT2}, s{sT0}")
    wavered(vL, "add", s0)
    e(f"ds_write_b32 v{vT2}, v{vL} offset:{L_LS}")
    e("s_mov_b32 exec_lo, 0x00ff00ff\ns_mov_b32 exec_hi, 0xff00ff00")
    e(f"ds_write_b128 v{vOw}, {vr(vO)} offset:{L_OB}")
    e("s_mov_b64 exec, -1")
    e(".p2align 6\nL_kloop:")
    switch()
    for st in range(2):
        e("s_barrier"); rdflag(); useflag()
        for g in range(2):
            r0 = 8 * st + 4 * g
            e("s_waitcnt vmcnt(12)")
            dots([ring(r0+t) for t in range(4)], kdst(st, g))
            pair(r0)
            red(st, g, 0)
            pair(r0+2)
    e(f"v_add_u32 v{vSA}, 256, v{vSA}")
    e(f"s_cmp_lt_u32 s{sIt}, s{sEnd}\ns_cbranch_scc1 L_kloop")
    if pst == 1: stamp(2)
    e(f"s_mov_b32 s{sPh}, 2\ns_mov_b32 s{sEnd}, 39\ns_add_u32 s{sNOff}, s{sOffA}, {15*0x10000}")
    e("s_branch L_k2v")
    e("L_helper:")
    e(f"s_setprio {hprio}")
    ids()
    if warm0 == 1:
        e(f"s_getpc_b64 s[30:31]\nL_pc0:\ns_sub_u32 s30, s30, L_pc0-{KN}\ns_subb_u32 s31, s31, 0\nv_lshlrev_b32 v{vT2}, 7, v{vLane}\nglobal_load_dword v{vRm}, v{vT2}, s[30:31]\nv_add_u32 v{vT2}, 8192, v{vT2}\nglobal_load_dword v{vRm}, v{vT2}, s[30:31]")
    e(f"v_mov_b32 v{vT}, {imask}\nds_write_b32 v{vZ}, v{vT} offset:{L_FLAG}")
    for j in range(4): e(f"v_mov_b32 v{vB+j}, -1")
    e(f"v_lshlrev_b32 v{vKV}, 4, v{vLane}")
    e("s_waitcnt lgkmcnt(0)")
    e(f"s_mov_b32 s{sWS}, s28\ns_mov_b32 s{sWS+1}, s29")
    e(f"s_mov_b32 s{sW}, s22\ns_mov_b32 s{sW+1}, s23")
    e("s_cmp_lg_u32 s2, 0\ns_cbranch_scc1 L_h_noinit")
    e(f"v_lshlrev_b32 v{vT2}, 8, v{vLane}")
    if init2: e("s_mov_b32 exec_hi, 0")
    for i in range(1 if init2 else 5):
        e(f"s_mov_b32 s{sT0}, {i*0x4000}\nbuffer_store_dword v{vZ}, v{vT2}, s[{sWS}:{sWS+3}], s{sT0} offen sc1")
    e("s_waitcnt vmcnt(0)")
    e(f"s_mov_b32 s64, 1\ns_atomic_add s64, s[26:27], 0")
    e("L_h_noinit:")
    if init2:
        e(f"s_lshl_b32 s{sT0}, s2, 8\ns_add_u32 s{sT0}, s{sT0}, {WS_FB}\ns_mov_b64 exec, 1\nbuffer_store_dword v{vZ}, v{vZ}, s[{sWS}:{sWS+3}], s{sT0} offen sc1\ns_mov_b64 exec, -1")
    for r in range(2):
        if "n" not in abl:
            if r == 0 or not bflag:
                if swp:
                    e(f"s_lshl_b32 s{sT0}, s{sReg}, 10\nv_add_u32 v{vSt}, s{sT0}, v{vKV}\ns_mov_b32 s{sP}, {WS_P2}")
                    swz(vSt, vT)
                    e(f"buffer_store_dwordx4 {vr(vB)}, v{vSt}, s[{sWS}:{sWS+3}], s{sP} offen sc1")
                else: e(f"buffer_store_dwordx4 {vr(vB)}, v{vKV}, s[{sWS}:{sWS+3}], s{sRow} offen sc1")
                if not pb16: e(f"buffer_store_dwordx4 {vr(vB)}, v{vKV}, s[{sWS}:{sWS+3}], s{sRow} offen offset:1024 sc1")
            e("s_mov_b64 exec, 0xff")
            e(f"buffer_store_dwordx4 {vr(vB)}, v{vKV}, s[{sWS}:{sWS+3}], s{sRow} offen offset:{PLEN} sc1")
            e("s_mov_b64 exec, -1")
        if r == 0: e(f"s_add_u32 s{sRow}, s{sRow}, {256*ROW}")
    assert sm; consts2(None)
    e(f"s_lshl_b32 s{sOff}, s{sH}, 13\ns_add_u32 s{sOff}, s{sOff}, {WS_QX}")
    e(f"s_lshl_b32 s{sT1}, s{sJ}, 10\ns_add_u32 s{sT1}, s{sT1}, s{sOff}")
    e(f"s_lshl_b32 s{sNOff}, s{sH}, 8")
    e(f"v_and_b32 v{vT2}, 31, v{vLane}\nv_lshlrev_b32 v{vRow}, 8, v{vT2}")
    e(f"v_and_b32 v{vT2}, 15, v{vLane}\ns_lshl_b32 s{sT0}, s{sB}, 8\nv_lshl_add_u32 v{vT2}, v{vT2}, 4, s{sT0}\nv_and_b32 v{vT}, 16, v{vLane}\nv_lshl_add_u32 v{vT2}, v{vT}, 6, v{vT2}\nv_and_b32 v{vT}, 32, v{vLane}\nv_lshl_add_u32 v{vT2}, v{vT}, 7, v{vT2}")
    e("s_barrier")
    hstamp(1)
    for w in range(4):
        for u in range(2): e(f"ds_read_b128 {vr(vR+8*w+4*u)}, v{vKV} offset:{L_QP + w*2048 + u*1024}")
    e(f"global_load_dword v{vT}, v{vZ}, s[26:27] sc1")
    e("s_waitcnt lgkmcnt(0)")
    for i in range(16): e(f"v_add_f32 v{vR+i}, v{vR+i}, v{vR+16+i}")
    for i in range(8): e(f"v_add_f32 v{vR+i}, v{vR+i}, v{vR+8+i}")
    for i in range(4): e(f"v_add_f32 v{vR+i}, v{vR+i}, v{vR+4+i}")
    e(f"buffer_store_dwordx4 {vr(vR)}, v{vKV}, s[{sWS}:{sWS+3}], s{sT1} offen sc1")
    hstamp(2)
    e("s_waitcnt vmcnt(0)")
    e(f"L_h_flag:\nv_cmp_ne_u32 vcc, 0, v{vT}\ns_cbranch_vccnz L_h_flagok\nglobal_load_dword v{vT}, v{vZ}, s[26:27] sc1\ns_waitcnt vmcnt(0)\ns_branch L_h_flag\nL_h_flagok:")
    hstamp(3)
    slp = f"s_sleep {qsl}\n" if qsl else ""
    if qmode == "v":
        e(f"s_mov_b32 s65, 1\ns_atomic_add s65, s[28:29], s{sNOff}")
        if nb: e("s_barrier")
        if "p" not in abl: e(f"s_branch L_h_qc1\nL_h_qc:\n{slp}L_h_qc1:\nglobal_load_dword v{vT}, v{vP1}, s[28:29] sc1\ns_waitcnt vmcnt(0)\nv_cmp_ne_u32 vcc, 8, v{vT}\ns_cbranch_vccnz L_h_qc")
    else:
        e(f"s_mov_b32 s65, 1\ns_atomic_add s65, s[28:29], s{sNOff} glc")
        if nb: e("s_barrier")
        e(f"s_waitcnt lgkmcnt(0)\ns_cmp_eq_u32 s65, 7\ns_cbranch_scc1 L_h_qcok")
        if nb: e("s_branch L_h_qc1")
        e(f"L_h_qc:\n{slp}L_h_qc1:")
        if qmode == "s": e(f"s_load_dword s65, s[28:29], s{sNOff} glc")
        else: e(f"s_mov_b32 s65, 0\ns_atomic_add s65, s[28:29], s{sNOff} glc")
        e(f"s_waitcnt lgkmcnt(0)\ns_cmp_lg_u32 s65, 8\ns_cbranch_scc1 L_h_qc\nL_h_qcok:")
    hstamp(4)
    for i in range(2): e(f"buffer_load_dwordx4 {vr(vR+4*i)}, v{vT2}, s[{sWS}:{sWS+3}], s{sOff} offen offset:{2048*i} sc1")
    e("s_waitcnt vmcnt(0)")
    for j in range(4): e(f"v_add_f32 v{vR+j}, v{vR+j}, v{vR+4+j}")
    e(f"v_cvt_pk_bf16_f32 v{vR}, v{vR}, v{vR+1}\nv_cvt_pk_bf16_f32 v{vR+1}, v{vR+2}, v{vR+3}")
    e(f"ds_write_b64 v{vA8}, {vr(vR, 2)} offset:{L_QT}")
    hstamp(5)
    e(f"s_mov_b32 s{sIt}, 3")
    if fg < 8:
        par = lambda v: bin(v).count("1") & 1
        def sub(x, k):
            if fg == 4: return par(x & [2, 5, 4, 3, 7, 2, 4, 7][k])
            d = [1, 3, 5, 7, 1, 2, 3, 5][k]
            reps = sorted({min(y, y ^ d) for y in range(8)})
            return reps.index(min(x, x ^ d))
        T = [sum(sub(x, k) << (2*k) for k in range(8)) for x in range(8)]
        e(f"s_mov_b32 s88, {T[0] | T[1] << 16}\ns_mov_b32 s89, {T[2] | T[3] << 16}\ns_mov_b32 s90, {T[4] | T[5] << 16}\ns_mov_b32 s91, {T[6] | T[7] << 16}")
        e(f"s_bitcmp1_b32 s2, 2\ns_cselect_b64 s[88:89], s[90:91], s[88:89]\ns_and_b32 s90, s2, 3\ns_lshl_b32 s90, s90, 4\ns_lshr_b64 s[88:89], s[88:89], s90")
    if sched:
        sm_ = sum(1 << i for i in range(40) if sched[i] == "1")
        e(f"s_mov_b32 s86, {sm_ & 0xffffffff}\ns_mov_b32 s87, {sm_ >> 32}\ns_mov_b32 s65, 0")
    vNew, vOld, vMb, vLn = vML, vML+1, vOw, vSA
    if hlp:
        e(f"s_mov_b32 s{sPk}, 0\ns_mov_b32 s{sPkB}, 0\ns_mov_b32 s{sRq}, 0\ns_mov_b32 s{sRk}, 0\nv_mov_b32 v{vOld}, 0\nv_mov_b32 v{vNew}, 0")
        e(f"s_lshl_b32 s{sReg}, s{sReg}, 8\ns_bitset1_b32 s{sReg}, 31")
        e(f"v_and_b32 v{vMb}, 31, v{vLane}\nv_lshlrev_b32 v{vLn}, 7, v{vMb}\nv_lshlrev_b32 v{vMb}, 2, v{vMb}")
        if hpat:
            e(f"v_and_b32 v{vLn}, 3, v{vLane}\nv_lshlrev_b32 v{vLn}, 7, v{vLn}\nv_bfe_u32 v{vT}, v{vLane}, 2, 1\nv_lshl_add_u32 v{vLn}, v{vT}, 15, v{vLn}\nv_bfe_u32 v{vT}, v{vLane}, 3, 2\nv_lshl_add_u32 v{vLn}, v{vT}, 9, v{vLn}")
            e(f"s_and_b32 s{sT0}, s2, 15\ns_lshl_b32 s{sT0}, s{sT0}, 11\ns_lshr_b32 s{sT1}, s2, 4\ns_lshl_b32 s{sT1}, s{sT1}, 16\ns_add_u32 s{sT0}, s{sT0}, s{sT1}\nv_add_u32 v{vLn}, s{sT0}, v{vLn}")
    def mask(d, n=8): return sum(1 << i for i in range(n) if ((i+1)*d)//n != (i*d)//n)
    tab = sum(mask(d) << (8*d) for d in range(8))
    e(f"s_lshr_b32 s{sNOff}, s2, 3\ns_and_b32 s{sOut}, s2, 7\ns_mov_b32 s{sInt}, {off*8}\ns_mov_b32 s{sMk}, 0\ns_mov_b32 s84, {-jn*jnd}\ns_mov_b32 s{sNx}, {tab & 0xffffffff}\ns_mov_b32 s{sNx+1}, {tab >> 32}")
    e(f"s_lshl_b32 s{sOff}, s{sH}, 17\ns_mov_b32 s{sLd}, {L_WO}")
    e("s_waitcnt lgkmcnt(0)")
    assert D1 + 8 < PB and PB + 4 < D2 and D2 + 8 < EW
    def dma8(lab, pad):
        e(f"s_cmp_eq_u32 s{sPh}, 0\ns_cbranch_scc1 {lab}")
        for i in range(2):
            e(f"s_mov_b32 m0, s{sLd}\ns_add_u32 s{sLd}, s{sLd}, {4096 + (128 if pad and i else 0)}")
            for t in range(4):
                e(f"buffer_load_dwordx4 v{vKV}, s[{sW}:{sW+3}], s{sOff} offen offset:{t*1024} {wopol} lds")
            e(f"s_add_u32 s{sOff}, s{sOff}, 4096")
        e(f"{lab}:")
    def calcml(dst):
        e(f"ds_read_b128 {vr(vS)}, v{vZ} offset:{L_LS}\nds_read_b128 {vr(vS+4)}, v{vZ} offset:{L_MX}\ns_waitcnt lgkmcnt(0)")
        e(f"v_add_f32 v{s0}, v{s0}, v{s1}\nv_add_f32 v{s2_}, v{s2_}, v{s3}\nv_max3_f32 v{dst+1}, v{vS+4}, v{vS+5}, v{vS+6}")
        e(f"v_add_f32 v{dst}, v{s0}, v{s2_}\nv_max_f32 v{dst+1}, v{dst+1}, v{vS+7}")
        e(f"v_and_b32 v{dst}, -2, v{dst}\nv_and_b32 v{dst+1}, -2, v{dst+1}")
    def putml(src):
        e(f"s_mov_b64 exec, {0xffff if mlfull else 1}")
        e(f"buffer_store_dwordx2 {vr(src, 2)}, v{vA8}, s[{sWS}:{sWS+3}], s{sRow} offen offset:{PLEN} sc1")
        e("s_mov_b64 exec, -1")
    def pubml(): calcml(vL); putml(vL)
    def putB():
        e("s_mov_b32 exec_lo, 0x00ff00ff\ns_mov_b32 exec_hi, 0x00ff00ff")
        for k in range(4):
            if swp:
                e(f"buffer_store_{PW} {vr(vR+PN*k, PN)}, v{vSt}, s[{sWS}:{sWS+3}], s{sP} offen sc1")
                if k < 3: e(f"v_xor_b32 v{vSt}, {0x10280 if k == 1 else 0x10200}, v{vSt}")
            else: e(f"buffer_store_{PW} {vr(vR+PN*k, PN)}, v{vSt}, s[{sWS}:{sWS+3}], s{sRow} offen offset:{k*(512>>hs)} sc1")
        e("s_mov_b64 exec, -1")
    e("L_h_loop:")
    e("s_barrier")
    lf = fg.bit_length() - 1
    def cp_addr(dk, dst, base):
        e((f"s_add_u32 s{sT0}, s65, {dk}" if sched else f"s_add_u32 s{sT0}, s{sIt}, {dk-3}"))
        e(f"s_mul_i32 s{dst}, s{sT0}, s{sOut}\ns_add_u32 s{dst}, s{dst}, s{sNOff}\ns_and_b32 s{dst}, s{dst}, 31")
        if rw:
            nl = 5 - rw
            if dk == 0: e(f"s_lshr_b32 s93, s{dst}, {nl}\ns_xor_b32 s93, s93, s{sT0}\ns_and_b32 s93, s93, {(1 << rw) - 1}")
            e(f"s_and_b32 s{dst}, s{dst}, {(1 << nl) - 1}\ns_lshl_b32 s{base}, s{sT0}, {nl}\ns_add_u32 s{dst}, s{dst}, s{base}\ns_mul_i32 s{dst}, s{dst}, {37*256}\ns_and_b32 s{dst}, s{dst}, 0xff00\ns_add_u32 s{dst}, s{dst}, {WS_FB}")
            e(f"s_lshr_b32 s{base}, s{sT0}, {8 - nl}\ns_lshl_b32 s{base}, s{base}, 3")
            return
        e(f"s_lshl_b32 s{base}, s{sT0}, {8 - lf}\ns_add_u32 s{dst}, s{dst}, s{base}\ns_and_b32 s{dst}, s{dst}, 255\ns_lshl_b32 s{dst}, s{dst}, 8\ns_add_u32 s{dst}, s{dst}, {WS_FB}")
        e(f"s_andn2_b32 s{base}, s{sT0}, {fg-1}")
    def request():
        e(f"s_sub_i32 s{sT0}, s{sPk}, s{sPkB}\ns_cmp_lt_i32 s{sT0}, {pt}\ns_cbranch_scc1 L_h_norq")
        e(f"s_mov_b32 s{sMk}, {jmax}")
        e(f"s_cmp_ge_u32 s{sIt}, 24\ns_cselect_b32 s{sT0}, 2, 1\ns_cmp_lt_u32 s{sIt}, 8\ns_cselect_b32 s{sT0}, 0, s{sT0}\ns_cmp_le_u32 s{sT0}, s{sRq}\ns_cbranch_scc1 L_h_norq")
        e(f"s_mov_b32 s{sRq}, s{sT0}\ns_lshl_b32 s{sT1}, s{sT0}, 2\ns_mov_b32 s{sPk}, 1\ns_atomic_add s{sPk}, s[26:27], s{sT1} glc\ns_waitcnt lgkmcnt(0)")
        e(f"s_cmp_ge_u32 s{sPk}, {hcap}\ns_cbranch_scc1 L_h_norq")
        e(f"s_add_u32 s{sT0}, s{sT0}, 1\ns_lshl_b32 s{sT0}, s{sT0}, 4\ns_add_u32 s{sPk}, s{sPk}, s{sT0}\ns_lshl_b32 s{sT1}, s{sPk}, 2\ns_or_b32 s{sPk}, s{sReg}, s{sIt}\ns_atomic_or s{sPk}, s[26:27], s{sT1} glc\ns_waitcnt lgkmcnt(0)")
        e(f"L_h_norq:\ns_mov_b32 s{sPk}, 0\ns_mov_b32 s{sPkB}, 0")
    if hlp:
        if not pk2: e("s_waitcnt lgkmcnt(0)"); request()
        if mbs: e(f"s_bitcmp1_b32 s{sIt}, 0\ns_cbranch_scc1 L_h_nomb")
        e(f"global_load_dword v{vNew}, v{vMb}, s[26:27] offset:128 sc1")
        if mbs: e("L_h_nomb:")
    if dummy:
        for dd in range(dummy):
            e(f"s_lshl_b32 s93, s{sIt}, 5\ns_add_u32 s93, s93, s{sNOff}\ns_add_u32 s93, s93, {64*dd}\ns_and_b32 s93, s93, 255\ns_lshl_b32 s93, s93, 8\ns_andn2_b32 s93, s93, {((1 << dsh) - 1) << 8}\ns_add_u32 s93, s93, {WS_FB+4}")
            if dk_ == "a": e(f"s_atomic_add s{94+dd}, s[28:29], s93 glc")
            elif dk_ == "n": e(f"s_atomic_add s{94+dd}, s[28:29], s93")
            elif dk_ == "z": e(f"s_mov_b32 s{94+dd}, 0\ns_atomic_add s{94+dd}, s[28:29], s93 glc")
            elif dk_ == "l": e(f"s_load_dword s{94+dd}, s[28:29], s93 glc")
            elif dk_ == "v": e(f"s_mov_b64 exec, 1\nbuffer_load_dword v{vNmc}, v{vZ}, s[{sWS}:{sWS+3}], s93 offen sc1\ns_mov_b64 exec, -1")
            elif dk_ == "s": e(f"s_mov_b64 exec, 1\nbuffer_store_dword v{vZ}, v{vZ}, s[{sWS}:{sWS+3}], s93 offen sc1\ns_mov_b64 exec, -1")
            elif dk_ == "p": e(f"s_mov_b64 exec, 1\nbuffer_store_dword v{vZ}, v{vZ}, s[{sWS}:{sWS+3}], s93 offen\ns_mov_b64 exec, -1")
            elif dk_ == "w": e(f"s_mov_b64 exec, 1\nbuffer_atomic_add v{vNmc}, v{vZ}, s[{sWS}:{sWS+3}], s93 offen sc0\ns_mov_b64 exec, -1")
            elif dk_ == "t": e(f"s_mov_b64 exec, 1\nbuffer_atomic_add v{vNmc}, v{vZ}, s[{sWS}:{sWS+3}], s93 offen sc0 nt\ns_mov_b64 exec, -1")
    if sched: e(f"s_bitcmp0_b64 s[86:87], s{sIt}\ns_cbranch_scc1 L_h_nocp")
    cp_addr(0, sT1, sEnd)
    if rw:
        e(f"s_cmp_eq_u32 s93, 0\ns_cselect_b32 s93, 7, 8\ns_cbranch_scc1 L_h_wr\ns_load_dword s{sT2}, s[28:29], s{sT1} glc\ns_branch L_h_rd\nL_h_wr:")
    e(f"s_mov_b32 s{sT2}, 1\ns_atomic_add s{sT2}, s[28:29], s{sT1} glc")
    if rw: e("L_h_rd:")
    if pb:
        e(f"s_mov_b32 s88, 8\ns_mov_b32 s89, 0\ns_cmp_ge_i32 s{sRk}, {pbe}\ns_cbranch_scc1 L_h_nopb\ns_sub_u32 s{sT0}, s{sIt}, {pbr[0]}\ns_cmp_ge_u32 s{sT0}, {pbr[1] - pbr[0]}\ns_cbranch_scc1 L_h_nopb")
        cp_addr(-1, 90, 89)
        e("s_load_dword s88, s[28:29], s90 glc\nL_h_nopb:")
    if hlp and pk2:
        e(f"s_cmp_lt_i32 s{sRk}, {8 - 8//fg}\ns_cbranch_scc1 L_h_nocp\ns_sub_u32 s{sT0}, s{sIt}, {pk2[0]}\ns_cmp_ge_u32 s{sT0}, {pk2[1] - pk2[0]}\ns_cbranch_scc1 L_h_nocp")
        cp_addr(pd, 92, sPkB)
        e(f"s_load_dword s{sPk}, s[28:29], s92 glc")
    if sched or pk2: e(f"L_h_nocp:")
    e(f"s_cmp_lg_u32 s{sIt}, {D2}\ns_cbranch_scc1 L_h_nosw")
    e(f"s_mov_b32 s{sW}, s12\ns_mov_b32 s{sW+1}, s13\ns_lshl_b32 s{sOff}, s{sH}, 17\ns_mov_b32 s{sLd}, {L_WO}\nL_h_nosw:")
    e(f"s_sub_u32 s{sT0}, s{sIt}, {D1}\ns_cmp_lt_u32 s{sT0}, 8\ns_cselect_b32 s{sPh}, 1, 0")
    e(f"s_sub_u32 s{sT0}, s{sIt}, {D2}\ns_cmp_lt_u32 s{sT0}, 8\ns_cselect_b32 s{sPh}, 1, s{sPh}")
    if not hlp: e(f"s_cmp_eq_u32 s{sIt}, {D1+8}\ns_cbranch_scc1 L_h_wait\ns_cmp_lg_u32 s{sIt}, {D2+8}\ns_cbranch_scc1 L_h_nowait\nL_h_wait:\ns_waitcnt vmcnt(0)\nL_h_nowait:")
    dma8("L_h_d1", False)
    e(f"s_sub_u32 s{sRed}, s{sIt}, {PB}\ns_cmp_ge_u32 s{sRed}, 4\ns_cbranch_scc1 L_h_now")
    for t in range(16): wread(t)
    e("L_h_now:")
    e("s_barrier")
    if hlp: e(f"s_waitcnt vmcnt(8)\ns_cmp_lg_u32 s{sPh}, 0\ns_cbranch_scc1 L_h_mb\ns_waitcnt vmcnt(0)\nL_h_mb:")
    dma8("L_h_d2", True)
    if sched: e("s_waitcnt lgkmcnt(0)\n" + ("" if pk2 else f"s_mov_b32 s{sRk}, 0\n") + f"s_bitcmp0_b64 s[86:87], s{sIt}\ns_cbranch_scc1 L_h_noctl")
    if hlp and pk2: e("s_waitcnt lgkmcnt(0)"); request()
    e(f"s_waitcnt lgkmcnt(0)\ns_sub_u32 s{sT2}, s{sT2}, s{sEnd}\ns_lshl_b32 s{sT2}, s{sT2}, {4 - lf}\ns_sub_i32 s{sT2}, s{sT2}, {'s93' if rw else 8 - 8//fg}\ns_mov_b32 s{sRk}, s{sT2}")
    e(f"s_mul_i32 s{sT0}, s{sT2}, {ki}\ns_add_i32 s{sInt}, s{sInt}, s{sT0}\ns_min_i32 s{sInt}, s{sInt}, {(off+imax)*8}\ns_max_i32 s{sInt}, s{sInt}, {(off-imax)*8}")
    if eg:
        e(f"s_cmp_ge_u32 s{sIt}, {eg[0]}\ns_cselect_b32 s{sT0}, {eg[1]}, {kp}\ns_cselect_b32 s30, {eg[2]}, {pcap}\ns_cselect_b32 s31, {eg[3]*8}, 0")
        e(f"s_mul_i32 s{sT0}, s{sT2}, s{sT0}\ns_add_i32 s{sT0}, s{sT0}, s{sInt}\ns_add_i32 s{sT0}, s{sT0}, s31\ns_ashr_i32 s{sT0}, s{sT0}, 6\ns_max_i32 s{sT0}, s{sT0}, 0\ns_min_i32 s{sT0}, s{sT0}, s30")
    else:
        e(f"s_mul_i32 s{sT0}, s{sT2}, {kp}\ns_add_i32 s{sT0}, s{sT0}, s{sInt}\ns_ashr_i32 s{sT0}, s{sT0}, 6\ns_max_i32 s{sT0}, s{sT0}, {pmin}\ns_min_i32 s{sT0}, s{sT0}, {pcap}")
    if boost:
        bm = sum(1 << i for i in boost[1])
        e(f"s_mov_b32 s30, {bm}\ns_bitcmp1_b32 s30, s{sIt}\ns_cselect_b32 s30, {boost[0]}, 0\ns_cmp_lt_u32 s{sIt}, 32\ns_cselect_b32 s30, s30, 0")
        if len(boost) > 2: e(f"s_cmp_ge_i32 s{sT2}, {boost[2]}\ns_cselect_b32 s30, s30, 0")
        e(f"s_add_i32 s{sT0}, s{sT0}, s30")
    if ja:
        e(f"s_cmp_ge_i32 s{sT2}, {min(2*jr-7, 8 - 8//fg)}\ns_cselect_b32 s{sEnd}, {ja}, 0\ns_cmp_lt_i32 s{sT2}, 0\ns_cselect_b32 s{sEnd}, {-jb}, s{sEnd}")
        e(f"s_add_i32 s{sMk}, s{sMk}, s{sEnd}\ns_max_i32 s{sMk}, s{sMk}, {-ja*jd}\ns_min_i32 s{sMk}, s{sMk}, {jmax}\ns_max_i32 s{sEnd}, s{sMk}, 0\ns_add_i32 s{sT0}, s{sT0}, s{sEnd}\ns_min_i32 s{sT0}, s{sT0}, 24")
    if jn:
        assert len(LV) == 5
        e(f"s_cmp_le_i32 s{sT2}, {max(2*jnr-7, 8//fg - 8)}\ns_cselect_b32 s{sEnd}, {jn}, 0\ns_cmp_gt_i32 s{sT2}, 0\ns_cselect_b32 s{sEnd}, {-jnb}, s{sEnd}")
        e(f"s_add_i32 s84, s84, s{sEnd}\ns_max_i32 s84, s84, {-jn*jnd}\ns_min_i32 s84, s84, 8\ns_max_i32 s{sEnd}, s84, 0\ns_sub_i32 s{sT0}, s{sT0}, s{sEnd}\n" + (f"s_sub_i32 s88, s88, s89\ns_sub_i32 s88, {8 - pbk}, s88\ns_max_i32 s88, s88, 0\ns_mul_i32 s88, s88, {pb}\ns_sub_i32 s{sT0}, s{sT0}, s88\n" if pb else "") + f"s_add_i32 s{sT0}, s{sT0}, 8\ns_min_i32 s{sT0}, s{sT0}, 31\ns_max_i32 s{sT0}, s{sT0}, 0")
    e(f"s_and_b32 s{sT2}, s{sT0}, 7\ns_lshl_b32 s{sT2}, s{sT2}, 3\ns_lshr_b64 s[30:31], s[{sNx}:{sNx+1}], s{sT2}\ns_and_b32 s30, s30, 0xff\ns_add_u32 s30, s30, 1")
    e(f"s_andn2_b32 s{sT0}, s{sT0}, 7\ns_lshl_b32 s{sT2}, s30, s{sT0}\ns_sub_u32 s{sT2}, s{sT2}, 1")
    e(f"v_mov_b32 v{vT}, s{sT2}\nds_write_b32 v{vZ}, v{vT} offset:{L_FLAG}\ns_waitcnt lgkmcnt(0)")
    if sched: e("L_h_noctl:")
    if pprio is not None: e(f"s_setprio {pprio}")
    if "P" in abl: e(f"s_cmp_lt_u32 s{sRed}, 4\ns_cselect_b32 s{sWS+2}, 0, 0x400000")
    e(f"s_cmp_lt_u32 s{sRed}, 4\ns_cbranch_scc1 L_proj\ns_branch L_h_nop")
    e(f"L_h_projret:\nv_add_u32 v{vWa}, 256, v{vWa}")
    if sm: e(f"v_add_u32 v{vWb}, 256, v{vWb}")
    if defer or batchB:
        for k in range(3 * PN): e(f"v_mov_b32 v{vR+k}, v{vR+k+PN}")
        for k in range(PN): e(f"v_mov_b32 v{vR+3*PN+k}, v{vS+k}")
        if batchB:
            e(f"s_cmp_lg_u32 s{sRed}, 3\ns_cbranch_scc1 L_h_nop"); putB()
    elif swp: e(f"s_cmp_eq_u32 s{sRed}, 1\ns_cselect_b32 s{sT0}, 0x80, 0\nv_xor_b32 v{vSt}, 0x10200, v{vSt}\nv_xor_b32 v{vSt}, s{sT0}, v{vSt}")
    else: e(f"v_add_u32 v{vSt}, {512 >> hs}, v{vSt}")
    e("L_h_nop:")
    if pprio is not None: e(f"s_setprio {hprio}")
    e(f"s_cmp_lg_u32 s{sIt}, {PB-1}\ns_cbranch_scc1 L_h_n1")
    if not bflag: pubml()
    e(f"buffer_load_dword v{vRm}, v{vRow}, s[{sWS}:{sWS+3}], 0 offen sc1\nL_h_n1:")
    e(f"s_cmp_lg_u32 s{sIt}, {PB+4}\ns_cbranch_scc1 L_h_n2")
    e(f"L_h_chk:\ns_waitcnt vmcnt(0)\nv_cmp_ne_u32 vcc, 8, v{vRm}\ns_cbranch_vccz L_h_chkok\nbuffer_load_dword v{vRm}, v{vRow}, s[{sWS}:{sWS+3}], 0 offen sc1\ns_branch L_h_chk\nL_h_chkok:")
    assert bflag and lateP
    if defer: calcml(vR+32)
    else: pubml()
    e("L_h_n2:")
    if hlp:
        e(f"v_cmp_ne_u32 vcc, v{vNew}, v{vOld}\nv_mov_b32 v{vOld}, v{vNew}\ns_mov_b32 s30, vcc_lo\ns_mov_b32 exec_hi, 0")
        e(f"L_h_srv:\ns_ff1_i32_b32 s31, s30\ns_cmp_lt_i32 s31, 0\ns_cbranch_scc1 L_h_srvend\ns_bitset0_b32 s30, s31\nv_readlane_b32 s{sT2}, v{vOld}, s31")
        e(f"s_cmp_lt_u32 s31, 16\ns_cselect_b32 s{sD}, s6, s8\ns_cselect_b32 s{sD+1}, s7, s9\ns_cselect_b32 s{sT0}, 8, 24")
        e(f"s_lshr_b32 s{sT1}, s2, 4\ns_add_u32 s{sT0}, s{sT0}, s{sT1}\ns_and_b32 s{sT1}, s{sT2}, 255\ns_cmp_le_u32 s{sT0}, s{sT1}\ns_cbranch_scc1 L_h_srv")
        e(f"s_bfe_u32 s{sT2}, s{sT2}, 0x80008")
        if foreign:
            lo_, p = (0, 16) if "k" in fwhich else (16, 18)
            if "k" in fwhich or "v" in fwhich:
                e(f"s_sub_u32 s{sT0}, s31, {lo_}\ns_cmp_lt_u32 s{sT0}, 16\ns_cselect_b32 s{sT0}, s{sT2}, 255\ns_cmp_lt_u32 s{sT0}, {2*foreign}\ns_cselect_b32 s{sD}, s{p}, s{sD}\ns_cselect_b32 s{sD+1}, s{p+1}, s{sD+1}")
        if hpat: e(f"s_lshl_b32 s{sT0}, s{sT2}, 20")
        else: e(f"s_lshl_b32 s{sT2}, s{sT2}, 20\ns_lshl_b32 s{sT0}, s2, 12\ns_add_u32 s{sT0}, s{sT0}, s{sT2}")
        e(f"buffer_load_dword v{vNmc}, v{vLn}, s[{sD}:{sD+3}], s{sT0} offen\ns_branch L_h_srv\nL_h_srvend:\ns_mov_b64 exec, -1")
        if not pk2:
            e(f"s_cmp_lt_i32 s{sRk}, {8 - 8//fg}\ns_cbranch_scc1 L_h_nopk\ns_cmp_ge_u32 s{sIt}, 35\ns_cbranch_scc1 L_h_nopk")
            if pkj is not None: e(f"s_cmp_lt_i32 s{sMk}, {pkj}\ns_cbranch_scc1 L_h_nopk")
            cp_addr(pd, sT1, sPkB)
            e(f"s_load_dword s{sPk}, s[28:29], s{sT1} glc\nL_h_nopk:")
    if helpat:
        p = 16 if "k" in fwhich else 18
        e(f"s_cmp_lg_u32 s{sIt}, {helpat}\ns_cbranch_scc1 L_h_n5")
        e(f"s_mov_b32 s{sD}, s{p}\ns_mov_b32 s{sD+1}, s{p+1}\nv_lshlrev_b32 v{vT2}, {hstride}, v{vLane}\ns_lshl_b32 s{sT0}, s2, 12")
        if hstride == 7: e("s_mov_b32 exec_hi, 0")
        for r in range(2 * foreign):
            e(f"buffer_load_dword v{vML}, v{vT2}, s[{sD}:{sD+3}], s{sT0} offen\ns_add_u32 s{sT0}, s{sT0}, 0x100000")
        e("s_mov_b64 exec, -1\nL_h_n5:")
    if warm:
        e(f"s_cmp_lg_u32 s{sIt}, {warm}\ns_cbranch_scc1 L_h_n3")
        e(f"s_getpc_b64 s[30:31]\nL_pc:\ns_sub_u32 s30, s30, L_pc-L_vloop\ns_subb_u32 s31, s31, 0\nv_lshlrev_b32 v{vT2}, 7, v{vLane}\nglobal_load_dword v{vRm}, v{vT2}, s[30:31]\nL_h_n3:")
    if sched: e(f"s_bitcmp1_b64 s[86:87], s{sIt}\ns_addc_u32 s65, s65, 0")
    e(f"s_add_u32 s{sIt}, s{sIt}, 1\ns_cmp_lt_u32 s{sIt}, {lastfb}\ns_cbranch_scc1 L_h_loop")
    if hml:
        assert rmap == 1
        e(f"s_and_b32 s{sRed}, s2, 1\ns_bfe_u32 s{sT2}, s2, 0x20001\ns_lshl2_add_u32 s{sRed}, s{sRed}, s{sT2}\ns_mul_i32 s{sRed}, s{sRed}, {ROW*64}\ns_add_u32 s{sRed}, s{sRed}, {WS_P}")
        e(f"v_mul_u32_u24 v{vRow}, {ROW}, v{vLane}\ns_mov_b32 s{sCs}, {f32(C_SCALE)}")
    nb_ = 2 * (40 - lastfb)
    for i in range(nb_):
        e("s_barrier")
        if defer == nb_ - i + 1: putB()
    if defer >= 2:
        e("s_waitcnt vmcnt(0)"); putml(vR+32)
    e(f"s_sub_u32 s{sRow}, s{sRow}, {256*ROW}")
    e("s_barrier")
    pubml()
    if defer == 1:
        e(f"s_add_u32 s{sRow}, s{sRow}, {256*ROW}"); putB()
    e("s_barrier")
    if defer == 1:
        e("s_waitcnt vmcnt(0)"); putml(vR+32)
    if hml:
        e(f"buffer_load_dwordx2 {vr(vML, 2)}, v{vRow}, s[{sWS}:{sWS+3}], s{sRed} offen offset:{PLEN} sc1\ns_waitcnt vmcnt(0)")
        mlpoll(); e("s_nop 0"); weights()
        e(f"ds_write_b32 v{vA8}, v{vP0} offset:{L_WT}\ns_waitcnt lgkmcnt(0)\ns_barrier")
    if hst: e("s_branch L_wst")
    e("L_end:\ns_endpgm")
    e(f""".section .rodata,"a"
.p2align 6
.amdhsa_kernel {KN}
  .amdhsa_next_free_vgpr {NV}
  .amdhsa_next_free_sgpr 96
  .amdhsa_accum_offset {NV}
  .amdhsa_group_segment_fixed_size 0
  .amdhsa_kernarg_size 104
  .amdhsa_user_sgpr_count 2
  .amdhsa_user_sgpr_kernarg_segment_ptr 1
  .amdhsa_system_sgpr_workgroup_id_x 1
.end_amdhsa_kernel""")
    txt = "\n".join(x for x in a if x is not None) + "\n"
    if "w" in abl: txt = "\n".join(l for l in txt.split("\n") if not l.endswith(" lds"))
    return txt
if __name__ == "__main__":
    build("k8", gen(stamps=0))
```

```python
import mkprobe, gen_k7, gen_k8, sys
from build import build
names=[]
V = eval(open("cfg.txt").read())
for rep in "abcdef"[:int(sys.argv[1]) if len(sys.argv)>1 else 2]:
    for n, kw in V.items(): build(n+"_"+rep, (gen_k7 if n.startswith("k7") else gen_k8).gen(**{"stamps":1, **kw}), check=False); names.append(n+"_"+rep)
open("names.txt","w").write(" ".join(sorted(names)))
```

```python
import sys, struct
from build import build, KN
REF = "concat_heads__gqa_block_cached__sliding_block_cached__decode.s.ref"
C_SCALE = 0.08838834764831845 * 1.4426950408889634
def f32(x): return "0x%08x" % struct.unpack("<I", struct.pack("<f", x))[0]

def gen(hi=5, lo=3, cut=3, burst=1, pol="nt", wqpol="nt", wopol="nt", stamps=0, final=0, abl="", endhi=1, shi=5,
        pst=0, hst=0, probe=None, x13=1, pre0=8, peel=1, warm=0, phi=12, prepol="", psl=0, lateP=1, warm0=2, trace=0, qsl=0, preread=0, qmode="s", nb=0, bflag=1, mlearly=1, rmap=1, psl2=0, dbgst=0, kp=40, ki=2, off=15, x14=0, imax=64, ep=0, clk=0, foreign=0, fwhich="kv", lv=(3,4,6,9,12), ja=4, jb=6, jr=7, jmax=16, pcap=8, helpat=0, hstride=6, hlp=1, pd=1, pt=7, hcap=16, lastfb=39, pwg=None, xpos=7, lin=1, init2=1, mlfull=1, hprio=0, pprio=None, sprio=1, pb16=1, defer=0, imask=0x55ff, pkj=4, hml=1, hpat=0, opol="nt", sched="0000101010101010101010101010101010111111", dly=None, perm=None, eg=None, boost=None, hx=1, tb=((10,13),(11,),(14,)), jx=(10,11), jn=1, jnr=1, jnb=8, jnd=3, xf=1, pmin=0, sb1=0, sm=1, fg=8, jd=3, pk2=(8,33), wpos=0, dummy=0, dk_="a", dsh=0, rw=2, swp=0, swq=0, batchB=0, rowpad=128, dpoll=0, mbs=0, pb=0, pbr=(5,40), pbe=7, pbk=0, qhalf=0, tramp=0, rr=0, rre=-1, rrk=0, rrd=1, wonat=0, rew=0, ck3=1, pamp=1, pbase=0, pavg=0):
    NW = 4
    PLEN = 1024 if pb16 else 2048
    ROW = PLEN + rowpad
    hs = 1 if pb16 else 0
    WS_QC, WS_FB, WS_QX, WS_P = 0, 0x2000, 0x40000, 0x100000
    L_QP = 0
    L_OB, L_LS, L_MX, L_DUP = 0, 2048, 2064, 2304
    L_QT, L_FLAG = 8192, 8704
    L_SC = 9216
    L_WO = 25600
    LDS = L_WO + 131072 + 1024
    a = []; e = a.append
    vT, vKV, vL, vMx = 0, 1, 2, 3
    vQ, vM, vO = 4, 8, 12
    vNmc, vZ, vLane, vT2 = 16, 17, 18, 19
    vS, vB = 20, 28
    vRm, vSA, vP0, vP1 = 44, 45, 46, 47
    vR, vW = 48, 112
    vA8, vA64, vSt, vOw, vRow, vWa, vML = 240, 241, 242, 243, 244, 245, 246
    vN0, vN1, vIx, vWb = 248, 249, 250, 251
    NV = 256 if trace else 252
    vTr, sTr, sTi = 252, 82, 86
    def tr_issue():
        if trace: e(f"s_memrealtime s[{sTr}:{sTr+1}]")
    def tr_put():
        if trace: e(f"s_mov_b32 m0, s{sTi}\ns_bitcmp1_b32 s{sTi}, 6\ns_cbranch_scc1 1f\nv_writelane_b32 v{vTr}, s{sTr}, m0\ns_branch 2f\n1:\nv_writelane_b32 v{vTr+1}, s{sTr}, m0\n2:\ns_add_u32 s{sTi}, s{sTi}, 1")
    def tr():
        if trace: tr_issue(); e("s_waitcnt lgkmcnt(0)"); tr_put()
    def vr(b, n=4): return f"v[{b}:{b+n-1}]"
    ring = lambda i: vR + 4 * i
    Wa = lambda i: vW + 4 * i
    Wb = lambda i: vW + 64 + 4 * i
    sD, sW, sWS = 32, 36, 40
    sWave, sJ, sH, sB, sHalf = 3, 44, 45, 46, 47
    sOff, sOffA, sOffB, sIt, sRed, sPh = 48, 49, 50, 51, 52, 53
    sCs, sRow, sT0, sT1, sT2, sEnd = 54, 55, 56, 57, 58, 59
    sNx, sNOff, sOut = 60, 62, 63
    sLd, sRed2 = 80, 81
    sMk, sInt = 78, 79
    sPk, sPkB, sRq, sReg, sRk = 49, 50, 54, 81, 85
    sSt = 66
    D1, PB, D2, EW = 4, 13, 18, 27
    hdr = open(REF).read().split("; Override launch")[0] if final else ""
    e(hdr + f"; @launch grid=(256,1,1) block=({(NW+1)*64},1,1) lds={LDS}")
    e('.amdgcn_target "amdgcn-amd-amdhsa--gfx950"\n.text')
    e(f".globl {KN}\n.p2align 8\n.type {KN},@function\n{KN}:")
    def hstamp(i):
        if hst: e(f"s_memrealtime s[{sSt+2*i}:{sSt+2*i+1}]")
    def stamp(i):
        if cyc and i in cyc: e(f"s_memtime s[{96+2*cyc.index(i)}:{97+2*cyc.index(i)}]")
        if stamps: e(f"s_memrealtime s[{sSt+2*i}:{sSt+2*i+1}]")
    e("s_load_dwordx16 s[4:19], s[0:1], 0")
    e("s_load_dwordx8 s[20:27], s[0:1], 64")
    e("s_load_dwordx2 s[28:29], s[0:1], 96")
    stamp(0)
    e("s_cmpk_ge_u32 s2, 256\ns_cbranch_scc1 L_end")
    if perm: e(f"s_mul_i32 s2, s2, {perm[0]}\ns_add_u32 s2, s2, {perm[1]}\ns_lshr_b32 s3, s2, 3\ns_and_b32 s3, s3, 31\ns_lshl_b32 s2, s2, 5\ns_and_b32 s2, s2, 0xe0\ns_or_b32 s2, s2, s3")
    if dly:
        e(f"s_and_b32 s3, s2, {dly[0]}\ns_cmp_lg_u32 s3, {dly[1]}\ns_cbranch_scc1 L_nodly\ns_memrealtime s[90:91]\ns_waitcnt lgkmcnt(0)")
        e(f"L_dly:\ns_memrealtime s[92:93]\ns_waitcnt lgkmcnt(0)\ns_sub_u32 s3, s92, s90\ns_cmp_lt_u32 s3, {dly[2]*100}\ns_cbranch_scc1 L_dly\nL_nodly:")
    if wpos == 0:
        e(f"s_getpc_b64 s[30:31]\nL_pc:\nv_lshlrev_b32 v{vML+1}, 7, v0\nv_min_u32 v{vML+1}, L_end-L_pc, v{vML+1}\nglobal_load_dword v{vML+1}, v{vML+1}, s[30:31]")
    e(f"v_lshrrev_b32 v{vT2}, 4, v0\nv_and_b32 v{vS}, 15, v0")
    e(f"v_cmp_le_u32 vcc, 16, v{vT2}\nv_lshlrev_b32 v{vS}, 4, v{vS}")
    e(f"s_and_b32 s{sH}, s2, 7\ns_lshr_b32 s{sT0}, s2, 6\ns_lshl3_add_u32 s{sH}, s{sT0}, s{sH}")
    e(f"s_lshl_b32 s{sW+2}, 1, 22\ns_mov_b32 s{sW+3}, 0x20000")
    e("s_cbranch_vccnz " + ("L_hop1" if tramp else "L_helper"))
    def ids():
        e(f"v_lshrrev_b32 v{vZ}, 6, v0\nv_and_b32 v{vLane}, 63, v0\nv_readfirstlane_b32 s{sWave}, v{vZ}")
        e(f"s_bfe_u32 s{sJ}, s2, 0x30003\ns_lshr_b32 s{sB}, s{sJ}, 1\ns_and_b32 s{sHalf}, s{sJ}, 1")
        e(f"s_mov_b32 s{sD+2}, 0x10000000\ns_mov_b32 s{sD+3}, 0x20000\ns_mov_b32 s{sWS+2}, 0x400000\ns_mov_b32 s{sWS+3}, 0x20000")
        e(f"v_mov_b32 v{vZ}, 0")
        e(f"s_lshl_b32 s{sRow}, s{sB}, 5\ns_add_u32 s{sRow}, s{sRow}, s{sH}\ns_lshl1_add_u32 s{sReg}, s{sRow}, s{sHalf}")
        e(f"s_mul_i32 s{sRow}, s{sReg}, {ROW}\ns_add_u32 s{sRow}, s{sRow}, {WS_P}")
    WS_P2 = 0x200000
    sP = 94
    def swz(v, t):
        e(f"v_lshrrev_b32 v{t}, 2, v{v}\nv_and_b32 v{t}, 0x7f80, v{t}\nv_bfe_i32 v{vNmc}, v{v}, 7, 1\nv_and_b32 v{vNmc}, 0x8180, v{vNmc}\nv_xor_b32 v{t}, v{t}, v{vNmc}")
        e(f"v_bfe_i32 v{vNmc}, v{v}, 8, 1\nv_and_b32 v{vNmc}, 0x10200, v{vNmc}\nv_xor_b32 v{t}, v{t}, v{vNmc}\nv_and_b32 v{v}, 0xfffe007f, v{v}\nv_or_b32 v{v}, v{v}, v{t}")
    def consts(wv):
        e(f"v_and_b32 v{vT}, 1, v{vLane}\nv_lshlrev_b32 v{vT}, 4, v{vT}\nv_mov_b32 v{vT2}, 0xffff\nv_lshlrev_b32 v{vT}, v{vT}, v{vT2}")
        e(f"v_bfe_u32 v{vT2}, v{vLane}, 1, 2")
        for j in range(4):
            e(f"v_cmp_eq_u32 vcc, {j}, v{vT2}\ns_nop 1\nv_cndmask_b32 v{vM+j}, 0, v{vT}, vcc")
    def consts2(wv):
        e(f"v_lshlrev_b32 v{vA8}, 3, v{vLane}")
        e(f"v_lshrrev_b32 v{vT}, 3, v{vLane}\nv_lshlrev_b32 v{vA64}, 6, v{vT}")
        if sm:
            e(f"v_and_b32 v{vT}, 1, v{vT}\nv_lshrrev_b32 v{vT2}, 5, v{vLane}\nv_lshl_add_u32 v{vT}, v{vT2}, 1, v{vT}\nv_mul_u32_u24 v{vWa}, {16384+128}, v{vT}")
            e(f"v_bfe_u32 v{vT}, v{vLane}, 4, 1\nv_lshl_add_u32 v{vWa}, v{vT}, 10, v{vWa}")
            e(f"v_bfe_i32 v{vN1}, v{vLane}, 2, 1\nv_not_b32 v{vN0}, v{vN1}\nv_and_b32 v{vIx}, 3, v{vLane}\nv_mul_u32_u24 v{vIx}, 0x5555, v{vIx}")
            e(f"v_and_b32 v{vT2}, 7, v{vLane}\nv_lshl_add_u32 v{vWa}, v{vT2}, 4, v{vWa}")
        else:
            e(f"v_mul_u32_u24 v{vWa}, {16384+128}, v{vT}\nv_and_b32 v{vT2}, 7, v{vLane}\nv_lshl_add_u32 v{vWa}, v{vT2}, 4, v{vWa}")
        if lin:
            e(f"v_lshlrev_b32 v{vSt}, {4-hs}, v{vT2}\nv_lshrrev_b32 v{vT}, 4, v{vLane}\nv_lshl_add_u32 v{vSt}, v{vT}, {7-hs}, v{vSt}\nv_and_b32 v{vT2}, 16, v{vLane}")
        else:
            e(f"v_lshlrev_b32 v{vSt}, 5, v{vT2}\nv_and_b32 v{vT2}, 16, v{vLane}\nv_add_u32 v{vSt}, v{vSt}, v{vT2}")
            e(f"v_lshrrev_b32 v{vT}, 5, v{vLane}\nv_lshl_add_u32 v{vSt}, v{vT}, 8, v{vSt}")
        if wv is not None:
            e(f"s_lshl_b32 s{sT0}, s{wv}, 8\nv_add_u32 v{vWa}, s{sT0}, v{vWa}")
            e(f"s_lshl_b32 s{sT0}, s{wv}, {9-hs}\nv_add_u32 v{vSt}, s{sT0}, v{vSt}\ns_lshl_b32 s{sT0}, s{wv}, 9")
            e(f"v_and_b32 v{vT}, 15, v{vLane}\nv_lshlrev_b32 v{vT}, 5, v{vT}\nv_add3_u32 v{vOw}, v{vT}, v{vT2}, s{sT0}")
        if sm: e(f"v_add_u32 v{vWb}, {4*(16384+128)}, v{vWa}")
        if swp:
            assert pb16 and lin and not defer
            e(f"s_lshl_b32 s{sT0}, s{sReg}, 10\nv_add_u32 v{vSt}, s{sT0}, v{vSt}\ns_mov_b32 s{sP}, {WS_P2 + (0 if wv is not None else 0x40000)}")
            swz(vSt, vT)
    e(f"v_lshl_add_u32 v{vS}, v{vT2}, 16, v{vS}")
    e(f"s_and_b32 s{sT0}, s2, 0x18\ns_lshl_b32 s{sT1}, s{sT0}, 9\ns_add_u32 s{sT1}, s{sT1}, s{sH}\ns_lshl_b32 s{sT1}, s{sT1}, 8")
    if wpos == 2:
        e(f"s_getpc_b64 s[30:31]\nL_pc:\nv_lshlrev_b32 v{vML+1}, 7, v0\nv_min_u32 v{vML+1}, L_end-L_pc, v{vML+1}\nglobal_load_dword v{vML+1}, v{vML+1}, s[30:31]")
    e("s_bitcmp0_b32 s2, 5")
    if pst == 4: stamp(1)
    e("s_waitcnt lgkmcnt(0)")
    if pst == 4: stamp(2)
    e(f"s_cselect_b32 s{sW}, s10, s20\ns_cselect_b32 s{sW+1}, s11, s21")
    if "q" in abl:
        e(f"v_and_b32 v{vS}, 63, v0\nv_lshlrev_b32 v{vS}, 4, v{vS}\nv_bfe_u32 v{vS+2}, v0, 3, 1\ns_bfe_u32 s{sT1}, s2, 0x10003\nv_xor_b32 v{vS+2}, s{sT1}, v{vS+2}\nv_mul_u32_u24 v{vS+2}, 0x8100, v{vS+2}\nv_xor_b32 v{vS}, v{vS}, v{vS+2}")
        e(f"v_lshrrev_b32 v{vS+2}, 6, v0\nv_lshl_add_u32 v{vS}, v{vS+2}, 12, v{vS}\ns_bfe_u32 s{sT1}, s2, 0x10004\ns_lshl1_add_u32 s{sT1}, s{sH}, s{sT1}\ns_lshl_b32 s{sEnd}, s{sT1}, 16\ns_bitcmp0_b32 s2, 5")
    if "Q" in abl: e(f"s_cselect_b32 s{sIt}, 0, 0x400000\ns_add_u32 s{sW}, s6, s{sIt}\ns_addc_u32 s{sW+1}, s7, 0\ns_bitcmp0_b32 s2, 5")
    ops = []
    def wq(t):
        if "q" in abl:
            e(f"s_mov_b32 s{sT1}, s{sEnd}" if t == 0 else f"s_add_u32 s{sT1}, s{sEnd}, {((t & 3) << 10) | ((t >> 2) << 14)}")
        e(f"buffer_load_dwordx4 {vr(ring(8+t))}, v{vS}, s[{sW}:{sW+3}], s{sT1} offen {wqpol}"); ops.append(("w", t))
    def xld():
        e(f"global_load_dwordx4 {vr(vQ)}, v{vS+1}, s[30:31]"); ops.append(("x", 0))
        e(f"global_load_dwordx4 {vr(vO)}, v{vS+1}, s[30:31] offset:2048"); ops.append(("x", 1))
    assert xpos <= 7 or wpos != 1
    wq(0)
    if pst == 5: stamp(1); e("s_waitcnt vmcnt(0)"); stamp(2)
    e(f"s_cselect_b32 s30, s4, s14\ns_cselect_b32 s31, s5, s15")
    e(f"s_cselect_b32 s{sNx}, s12, s22\ns_cselect_b32 s{sNx+1}, s13, s23")
    if tlb2:
        e(f"s_load_dword s88, s[30:31], 0\ns_lshl_b32 s{sT2}, s{sH}, 17\ns_load_dword s89, s[{sNx}:{sNx+1}], s{sT2}")
        if tlb2 > 1: e("s_load_dword s90, s[28:29], 0xf0000\ns_load_dword s91, s[26:27], 128")
    for t in range(1, 8):
        e(f"s_addk_i32 s{sT1}, 8192"); wq(t)
        if t == min(xpos, 7):
            e(f"s_lshl_b32 s{sT0}, s{sT0}, 5\nv_lshl_add_u32 v{vS+1}, v{vT2}, 4, s{sT0}\nv_bfe_u32 v{vT2}, v0, 3, 1\nv_lshl_add_u32 v{vS+1}, v{vT2}, 10, v{vS+1}")
        if t == xpos: xld()
    if pst == 2: stamp(1)
    if warm0 == 2 and wpos == 1:
        e(f"s_getpc_b64 s[30:31]\nL_pc:\nv_lshlrev_b32 v{vML+1}, 7, v0\nv_min_u32 v{vML+1}, L_end-L_pc, v{vML+1}\nglobal_load_dword v{vML+1}, v{vML+1}, s[30:31]"); ops.append(("c", 0))
    if tramp: e("s_branch L_ov1\nL_hop1:\ns_branch " + ("L_hop2" if tramp > 1 else "L_helper") + "\nL_ov1:")
    if sprio: e(f"s_setprio {sprio}")
    ids()
    e(f"s_mov_b32 s{sW}, s{sNx}\ns_mov_b32 s{sW+1}, s{sNx+1}")
    if "O" in abl: e(f"s_bitcmp0_b32 s2, 5\ns_cselect_b32 s{sIt}, 0, 0x400000\ns_add_u32 s{sW}, s8, s{sIt}\ns_addc_u32 s{sW+1}, s9, 0")
    assert hml
    vKV1 = vML
    e(f"v_lshlrev_b32 v{vKV}, 4, v{vLane}\nv_bfe_u32 v{vT2}, v{vLane}, 3, 1")
    if hx: e(f"v_xor_b32 v{vT2}, s{sHalf}, v{vT2}")
    e(f"v_mul_u32_u24 v{vT2}, 0x8100, v{vT2}\nv_xor_b32 v{vKV}, v{vKV}, v{vT2}\nv_xor_b32 v{vKV1}, 0x8100, v{vKV}")
    e(f"s_lshl_b32 s{sT2}, s{sWave}, 12")
    for k, bit in enumerate(jx): e(f"s_bfe_u32 s{sT0}, s{sB}, {k | 0x10000}\ns_lshl_b32 s{sT0}, s{sT0}, {bit}\ns_xor_b32 s{sT2}, s{sT2}, s{sT0}")
    assert hx
    e(f"s_and_b32 s{sT0}, s{sB}, 1\ns_lshl1_add_u32 s{sT0}, s{sH}, s{sT0}\ns_lshl_b32 s{sT0}, s{sT0}, 16\ns_add_u32 s{sOff}, s{sT0}, s{sT2}")
    e(f"s_lshl_b32 s{sOffA}, s{sReg}, 20\ns_add_u32 s{sOffA}, s{sOffA}, s{sT2}")
    e(f"s_mul_i32 s{sT0}, s{sHalf}, {(1<<20) - (1<<18)}\ns_sub_u32 s{sOffB}, s{sOffA}, s{sT0}\ns_add_u32 s{sOffB}, s{sOffB}, {6144*256}")
    if foreign:
        e(f"s_lshr_b32 s{sEnd}, s{sOffA}, 21\ns_cmp_lt_u32 s{sEnd}, {foreign}")
        if "k" in fwhich: e("s_cselect_b32 s6, s16, s6\ns_cselect_b32 s7, s17, s7")
        if "v" in fwhich: e("s_cselect_b32 s8, s18, s8\ns_cselect_b32 s9, s19, s9")
        if "K" in fwhich: e("s_cselect_b32 s16, s6, s16\ns_cselect_b32 s17, s7, s17")
        if "V" in fwhich: e("s_cselect_b32 s18, s8, s18\ns_cselect_b32 s19, s9, s19")
    if trace: e(f"s_mov_b32 s{sTi}, 0\nv_mov_b32 v{vTr}, 0\nv_mov_b32 v{vTr+1}, 0"); tr()
    def xc(i):
        c = 0
        for k in range(3):
            if (i >> k) & 1:
                for b in tb[k]: c ^= 1 << b
        return c
    def ld(dst, i, srd=sD, p=pol, pre=None):
        c = xc(i)
        if pre and not xf: pre()
        if c: e(f"s_xor_b32 s{sT1}, s{sOff}, {c}")
        if pre and xf: pre()
        e(f"buffer_load_dwordx4 {vr(dst)}, v{vKV1 if i >= 8 else vKV}, s[{srd}:{srd+3}], s{sT1 if c else sOff} offen {p}")
        if i == 15: e(f"s_add_u32 s{sOff}, s{sOff}, 0x10000")
    kslot = lambda n: (Wa, ring, Wb, Wa)[n >> 4](n & 15)
    def sld(n):
        ops.append(("s", n))
        if n % 8 == 0: tr()
        if n < 8:
            if wonat:
                if n == 0: e(f"v_lshlrev_b32 v{vP0}, 4, v{vLane}\ns_and_b32 s{sT0}, s{sJ}, 3\ns_lshl2_add_u32 s{sT0}, s{sH}, s{sT0}\ns_lshl_b32 s{sT0}, s{sT0}, 15\ns_lshl_b32 s{sOff}, s{sWave}, {13 if wonat == 1 else 12}\ns_add_u32 s{sOff}, s{sOff}, s{sT0}")
                if n == 4: e(f"s_add_u32 s{sOff}, s{sOff}, {4096 if wonat == 1 else 16384}")
                e(f"buffer_load_dwordx4 {vr(vB + 4 * (n & 3))}, v{vP0}, s[{sW}:{sW+3}], s{sOff} offen offset:{1024*(n&3)} {prepol}")
            else: ld(vB + 4 * (n & 3), n, sW, prepol)
            if n == 7: e(f"s_mov_b32 s{sOff}, s{sOffB}")
        else: ld(kslot(n-8), (n-8) & 15)
    n = 0
    e(f"s_mov_b32 s{sD}, s16\ns_mov_b32 s{sD+1}, s17")
    while n < pre0:
        if n == 2 and tramp > 1: e("s_branch L_ov2\nL_hop2:\ns_branch L_helper\nL_ov2:")
        sld(n); n += 1
        if xpos == 7 + n: xld()
    e(f"s_mov_b32 s{sWS}, s28\ns_mov_b32 s{sWS+1}, s29")
    consts(sWave)
    e(f"s_mov_b32 s{sCs}, {f32(C_SCALE)}")
    e(f"s_mov_b32 s{sT0}, 0x01000100\ns_mov_b32 s{sT2}, 0x03020302")
    after = lambda op: len(ops) - 1 - ops.index(op)
    while shi > after(("x", 1)) - 1:
        e(f"s_waitcnt vmcnt({shi})"); sld(n); sld(n+1); n += 2
    e(f"s_waitcnt vmcnt({after(('x', 1))})")
    for j in range(8): e(f"v_mov_b32 v{vS+j}, 0")
    for t in range(8):
        for u in range(2):
            src = (vQ, vO)[u] + (t >> 1)
            e(f"v_perm_b32 v{vT}, v{src}, v{src}, s{sT0 if (t&1)==0 else sT2}")
            for j in range(4): e(f"v_and_b32 v{Wb(2*t+u)+j}, v{vT}, v{vM+j}")
    nlab = [0]
    LV = lv or (lo, hi)
    def thr(bit, n=None):
        if n is not None: e(f"s_waitcnt vmcnt({n})"); return
        nlab[0] += 1
        if LV[-1] < 12: e(f"s_waitcnt vmcnt({LV[-1]})")
        for k in range(len(LV) - 2, -1, -1):
            if len(LV) == 5 and k == 1:
                e(f"s_bitcmp1_b32 s{sMk}, {bit + 8}\ns_cbranch_scc1 L_t{nlab[0]}\ns_bitcmp1_b32 s{sMk}, {bit}\ns_cbranch_scc1 L_u{nlab[0]}\ns_waitcnt vmcnt({LV[0]})\nL_u{nlab[0]}:\ns_waitcnt vmcnt({LV[1]})")
                break
            e(f"s_bitcmp1_b32 s{sMk}, {bit + 8*k}\ns_cbranch_scc1 L_t{nlab[0]}\ns_waitcnt vmcnt({LV[k]})")
        e(f"L_t{nlab[0]}:")
    def pair(r, free=False):
        if burst == 2:
            thr(r >> 1, phi if free else None)
            ld(ring(r), r); ld(ring(r+1), r+1)
        else:
            for k in range(2):
                ld(ring(r+k), r+k, pre=lambda: thr((r + k) & 7, phi if free else None))
    def qm(t):
        for u in range(2):
            e(f"v_mfma_f32_16x16x32_bf16 {vr(vS+4*u)}, {vr(Wb(2*t+u))}, {vr(ring(8+t))}, {vr(vS+4*u)}")
    for t in range(8):
        while shi > after(("w", t)) - 1:
            e(f"s_waitcnt vmcnt({shi})"); sld(n); sld(n+1); n += 2
        e(f"s_waitcnt vmcnt({after(('w', t))})"); qm(t)
    e(f"v_and_b32 v{vT}, 15, v{vLane}\nv_lshlrev_b32 v{vT}, 5, v{vT}\nv_and_b32 v{vT2}, 16, v{vLane}\nv_add_u32 v{vT}, v{vT}, v{vT2}")
    e(f"v_lshrrev_b32 v{vT2}, 5, v{vLane}\nv_lshl_add_u32 v{vT}, v{vT2}, 9, v{vT}")
    e(f"s_lshl_b32 s{sT0}, s{sWave}, 11\nv_add_u32 v{vT}, s{sT0}, v{vT}\ns_nop 1")
    e(f"ds_write_b128 v{vT}, {vr(vS)} offset:{L_QP}\nds_write_b128 v{vT}, {vr(vS+4)} offset:{L_QP+1024}")
    e("s_waitcnt lgkmcnt(0)\ns_barrier")
    if pst == 2: stamp(2)
    first = 0
    while n < 56:
        if n == nb: e("s_barrier")
        thr(0, shi); sld(n)
        if sb1: thr(0, shi)
        sld(n+1); n += 2
        first += 1
        if first == 2: consts2(sWave)
        if first == 4:
            e(f"s_lshl_b32 s{sLd}, s{sWave}, 12\nv_and_b32 v{vSA}, 60, v{vLane}\nv_add_u32 v{vSA}, s{sLd}, v{vSA}")
            e(f"v_mov_b32 v{vRm}, 0xff7fffff")
            if rmap == 0:
                e(f"s_mov_b32 s{sOut}, s{sJ}")
                e(f"s_and_b32 s{sT0}, s2, 7\ns_lshl_b32 s{sT0}, s{sT0}, 2\ns_lshr_b32 s{sT2}, s2, 6\ns_add_u32 s{sT0}, s{sT0}, s{sT2}")
            else:
                e(f"s_and_b32 s{sOut}, s2, 7\ns_lshr_b32 s{sT0}, s2, 3")
            e(f"s_and_b32 s{sRed}, s{sOut}, 1\ns_lshl_b32 s{sRed}, s{sRed}, 2\ns_lshr_b32 s{sT2}, s{sOut}, 1\ns_add_u32 s{sRed}, s{sRed}, s{sT2}\ns_mul_i32 s{sRed}, s{sRed}, {ROW*64}\ns_add_u32 s{sRed}, s{sRed}, {WS_P}")
            e(f"s_lshl_b32 s{sT0}, s{sT0}, 2\ns_add_u32 s{sT0}, s{sT0}, s{sWave}")
            if swp:
                e(f"s_lshr_b32 s{sT2}, s{sOut}, 1\ns_lshl_b32 s{sT2}, s{sT2}, 16\ns_lshl3_add_u32 s{sT2}, s{sT0}, s{sT2}\nv_lshl_add_u32 v{vRow}, v{vLane}, 10, s{sT2}")
                swz(vRow, vT)
                e(f"s_and_b32 s{sRed2}, s{sOut}, 1\ns_lshl_b32 s{sRed2}, s{sRed2}, 18\ns_add_u32 s{sRed2}, s{sRed2}, {WS_P2}")
            else: e(f"s_lshl_b32 s{sT2}, s{sT0}, {4-hs}\ns_add_u32 s{sRed2}, s{sRed}, s{sT2}")
            if lin:
                e(f"s_and_b32 s{sT2}, s{sT0}, 7\ns_bfe_u32 s{sEnd}, s{sT0}, 0x10003\ns_lshl1_add_u32 s{sT2}, s{sT2}, s{sEnd}\ns_andn2_b32 s{sT0}, s{sT0}, 15\ns_add_u32 s{sT0}, s{sT0}, s{sT2}")
            e(f"s_lshl_b32 s{sT0}, s{sT0}, 3\ns_lshl_b32 s{sOut}, s{sOut}, 10\ns_add_u32 s{sOut}, s{sOut}, s{sT0}")
            if not swp: e(f"v_mul_u32_u24 v{vRow}, {ROW}, v{vLane}")
    e(f"v_and_b32 v{vT2}, 15, v{vLane}\nv_lshlrev_b32 v{vT2}, 4, v{vT2}")
    if not pst: stamp(1)
    e("s_barrier")
    e(f"ds_read_b128 {vr(vQ)}, v{vT2} offset:{L_QT+256}")
    dpp = lambda ctl, bank=0xf: f"{ctl} row_mask:0xf bank_mask:{hex(bank)}"
    def rdflag(): tr_issue(); e(f"ds_read_b32 v{vT}, v{vZ} offset:{L_FLAG}")
    def useflag(): e(f"s_waitcnt lgkmcnt(0)\nv_readfirstlane_b32 s{sMk}, v{vT}"); tr_put()
    def dots(regs, sb):
        for j in range(4):
            for t in range(4):
                e(f"v_dot2_f32_bf16 v{sb+t}, v{regs[t]+j}, v{vQ+j}, {'0' if j == 0 else 'v%d' % (sb+t)}")
    def kdst(st, g): return vS + 4*g if st == 0 else vB + 4*g
    def red(st, g, off):
        if st == 0: return
        a_, b_ = vS + 4*g, vB + 4*g
        for t in range(4): e(f"v_add_f32_dpp v{a_+t}, v{b_+t}, v{a_+t} {dpp('row_ror:8')}")
        e(f"v_add_f32_dpp v{a_}, v{a_}, v{a_} {dpp('row_half_mirror', 0x5)}")
        e(f"v_add_f32_dpp v{a_}, v{a_+1}, v{a_+1} {dpp('row_half_mirror', 0xa)}")
        e(f"v_add_f32_dpp v{a_+2}, v{a_+2}, v{a_+2} {dpp('row_half_mirror', 0x5)}")
        e(f"v_add_f32_dpp v{a_+2}, v{a_+3}, v{a_+3} {dpp('row_half_mirror', 0xa)}")
        for qp in ("[1,0,3,2]", "[2,3,0,1]"):
            e(f"v_add_f32_dpp v{a_}, v{a_}, v{a_} {dpp('quad_perm:' + qp)}\ns_nop 0")
            e(f"v_add_f32_dpp v{a_+2}, v{a_+2}, v{a_+2} {dpp('quad_perm:' + qp)}")
        e(f"ds_write_b32 v{vSA}, v{a_} offset:{L_SC + off + 128*g}")
        e(f"v_max3_f32 v{vRm}, v{vRm}, v{a_}, v{a_+2}")
        e(f"ds_write_b32 v{vSA}, v{a_+2} offset:{L_SC + off + 128*g + 64}")
    def wavered(x, op, tmp):
        e(f"v_{op}_f32_dpp v{x}, v{x}, v{x} {dpp('row_ror:4')}\ns_nop 1")
        e(f"v_{op}_f32_dpp v{x}, v{x}, v{x} {dpp('row_ror:8')}")
        e(f"v_mov_b32 v{tmp}, v{x}\ns_nop 1")
        e(f"v_permlane16_swap_b32 v{x}, v{tmp}\ns_nop 1")
        e(f"v_{op}_f32 v{x}, v{x}, v{tmp}")
        e(f"v_mov_b32 v{tmp}, v{x}\ns_nop 1")
        e(f"v_permlane32_swap_b32 v{x}, v{tmp}\ns_nop 1")
        e(f"v_{op}_f32 v{x}, v{x}, v{tmp}")
    for i in range(16):
        if i % 4 == 0:
            if i: e("s_barrier")
            rdflag(); useflag()
        if i == 0 and not pst: stamp(2)
        if i == 0 and pst == 7: stamp(1)
        if i == 8: e(f"s_mov_b32 s{sD}, s18\ns_mov_b32 s{sD+1}, s19\ns_mov_b32 s{sOff}, s{sOffB}")
        e("s_waitcnt vmcnt(12)")
        dots([kslot(4*i+t) for t in range(4)], kdst((i >> 1) & 1, i & 1))
        for k in range(2):
            if burst == 1: thr((2*i + k) & 7)
            elif k == 0: thr(i & 7)
            m = 2 * i + k
            ld(Wa(m) if i < 8 else ring(m - 16), m & 15)
        red((i >> 1) & 1, i & 1, 256 * (i >> 2))
    if pst in (6, 8): stamp(1)
    if pst == 7: stamp(2)
    e(f"s_mov_b32 s{sIt}, 4\ns_mov_b32 s{sEnd}, 8\ns_mov_b32 s{sPh}, 0")
    e(f"s_mov_b32 s{sNx}, s6\ns_mov_b32 s{sNx+1}, s7\ns_mov_b32 s{sNOff}, s{sOffA}")
    s0, s1, s2_, s3 = vS, vS+1, vS+2, vS+3
    e("L_k2v:")
    e(f"s_lshl_b32 s{sT0}, s{sWave}, 2\nv_mov_b32 v{vT2}, s{sT0}")
    wavered(vRm, "max", s0)
    e(f"ds_write_b32 v{vT2}, v{vRm} offset:{L_MX}")
    e(f"v_and_b32 v{vSA}, 60, v{vLane}\nv_add_u32 v{vSA}, s{sLd}, v{vSA}\nv_mov_b32 v{vL}, 0")
    for j in range(4): e(f"v_mov_b32 v{vO+j}, 0")
    e(f"s_add_u32 s{sIt}, s{sIt}, 1")
    e("s_waitcnt lgkmcnt(0)\ns_barrier")
    e(f"ds_read_b128 {vr(vS)}, v{vZ} offset:{L_MX}\ns_waitcnt lgkmcnt(0)")
    e(f"v_max3_f32 v{vMx}, v{s0}, v{s1}, v{s2_}\nv_max_f32 v{vMx}, v{vMx}, v{s3}")
    e(f"v_mul_f32 v{vNmc}, s{sCs}, v{vMx}\nv_sub_f32 v{vNmc}, 0, v{vNmc}")
    e("s_branch L_vnobar")
    def soft(p):
        e(f"v_fma_f32 v{p}, v{p}, s{sCs}, v{vNmc}")
        e(f"v_exp_f32 v{p}, v{p}")
    pr = [vS+4, vS+5, vS+6, vS+7]
    def ands(g):
        for t in range(4):
            p = pr[2*g + (t >> 1)]
            for j in range(4):
                if (j >> 1) == (t & 1): e(f"v_and_b32 v{vB+4*t+j}, v{p}, v{vM+j}")
                else: e(f"v_and_b32_dpp v{vB+4*t+j}, v{p}, v{vM+j} {dpp('row_half_mirror')}")
    def rdsc():
        for r in range(4): e(f"ds_read_b32 v{pr[r]}, v{vSA} offset:{L_SC + 64*r}")
    def soft4():
        for r in range(4): soft(pr[r])
        for r in range(4): e(f"v_add_f32 v{vL}, v{vL}, v{pr[r]}")
        for r in range(4): e(f"v_cvt_pk_bf16_f32 v{pr[r]}, v{pr[r]}, v{pr[r]}")
    def flip():
        for r in range(4): e(f"v_mov_b32_dpp v{pr[r]}, v{pr[r]} {dpp('row_ror:8')}")
    def pv(r0, ts):
        for t in ts: e(f"v_mfma_f32_16x16x32_bf16 {vr(vO)}, {vr(vB+4*t)}, {vr(ring(r0+t))}, {vr(vO)}")
    def switch():
        e(f"s_add_u32 s{sIt}, s{sIt}, 1\ns_cmp_eq_u32 s{sIt}, s{sEnd}")
        e(f"s_cselect_b32 s{sD}, s{sNx}, s{sD}\ns_cselect_b32 s{sD+1}, s{sNx+1}, s{sD+1}\ns_cselect_b32 s{sOff}, s{sNOff}, s{sOff}")
    def vstep(st, lab=None, free=False):
        e("s_barrier")
        if lab: e(lab)
        rdflag()
        if st == 0: rdsc()
        else: flip()
        useflag()
        if st == 0: soft4()
        for g in range(2):
            r0 = 8 * st + 4 * g
            ands(g)
            e("s_waitcnt vmcnt(12)")
            pv(r0, range(4))
            pair(r0, free); pair(r0+2, free)
    e(".p2align 6\nL_vloop:")
    e(f"s_sub_u32 s{sT0}, s{sIt}, {EW}\ns_cmp_lt_u32 s{sT0}, 8\ns_cbranch_scc1 L_wpiece\nL_vret:")
    switch()
    vstep(0, "L_vnobar:")
    if peel: e(f"s_cmp_eq_u32 s{sIt}, 39\ns_cbranch_scc1 L_peel")
    vstep(1)
    e(f"v_add_u32 v{vSA}, 256, v{vSA}")
    e(f"s_cmp_lt_u32 s{sIt}, s{sEnd}\ns_cbranch_scc1 L_vloop")
    if peel:
        e("s_branch L_v2k\nL_peel:")
        vstep(1, None, True)
        e(f"v_add_u32 v{vSA}, 256, v{vSA}")
    else:
        e(f"s_cmp_eq_u32 s{sPh}, 0\ns_cbranch_scc1 L_v2k")
    e("L_drain:")
    tr()
    rdsc()
    e(f"s_lshl_b32 s{sT0}, s{sWave}, 2\nv_mov_b32 v{vT2}, s{sT0}")
    e("s_waitcnt lgkmcnt(0)")
    soft4()
    wavered(vL, "add", s0)
    e(f"ds_write_b32 v{vT2}, v{vL} offset:{L_LS}")
    e("s_waitcnt lgkmcnt(0)\ns_barrier")
    for g in range(4):
        if g == 2: flip()
        ands(g & 1)
        for t in range(4):
            e(f"s_waitcnt vmcnt({15 - 4*g - t})"); pv(4*g, [t])
    stamp(3)
    if clk: e(f"s_memtime s[{sSt+2}:{sSt+3}]")
    if mlearly and "e" not in abl and not hml: e(f"buffer_load_dwordx2 {vr(vML, 2)}, v{vRow}, s[{sWS}:{sWS+3}], s{sRed} offen offset:{PLEN} sc1")
    else: e("s_nop 0")
    e("s_mov_b32 exec_lo, 0x00ff00ff\ns_mov_b32 exec_hi, 0xff00ff00\ns_nop 4")
    e(f"ds_write_b128 v{vOw}, {vr(vO)} offset:{L_OB}")
    e("s_mov_b64 exec, -1")
    e("s_waitcnt lgkmcnt(0)\ns_barrier")
    e("L_proj:")
    for w in range(4): e(f"ds_read_b64 {vr(vB+2*w, 2)}, v{vA8} offset:{L_OB + w*512}")
    e("s_waitcnt lgkmcnt(2)")
    e(f"v_add_f32 v{vB}, v{vB}, v{vB+2}\nv_add_f32 v{vB+1}, v{vB+1}, v{vB+3}")
    e("s_waitcnt lgkmcnt(0)")
    e(f"v_add_f32 v{vB+4}, v{vB+4}, v{vB+6}\nv_add_f32 v{vB+5}, v{vB+5}, v{vB+7}")
    e(f"v_add_f32 v{vB}, v{vB}, v{vB+4}\nv_add_f32 v{vB+1}, v{vB+1}, v{vB+5}")
    if sm: e(f"v_cvt_pk_bf16_f32 v{vP0}, v{vB}, 0\nv_cvt_pk_bf16_f32 v{vP1}, v{vB+1}, 0")
    else: e(f"v_cvt_pk_bf16_f32 v{vP0}, v{vB}, v{vB}\nv_cvt_pk_bf16_f32 v{vP1}, v{vB+1}, v{vB+1}")
    e(f"ds_write_b64 v{vA8}, {vr(vP0, 2)} offset:{L_DUP}")
    val = [vB+8, vB+12, vQ, vO]
    for u in range(4): e(f"ds_read_b128 {vr(val[u])}, v{vA64} offset:{L_DUP + 16*u}")
    def om(t):
        bp = vB + 4 * (t & 1)
        for cb in range(2):
            src = "0" if t == 0 else vr(vS+4*cb)
            e(f"v_mfma_f32_16x16x32_bf16 {vr(vS+4*cb)}, {vr(bp)}, {vr(vW+4*(2*t+cb))}, {src}")
    if sm:
        def sp(u):
            for cb in range(2): e(f"v_smfmac_f32_16x16x64_bf16 {vr(vS+4*cb)}, {vr(vB+4*(u&1))}, {vr(vW+8*(2*u+cb), 8)}, v{vIx}")
        for j in range(8): e(f"v_mov_b32 v{vS+j}, 0")
        for u in range(8):
            if u % 2 == 0: e(f"s_waitcnt lgkmcnt({3 - u//2})")
            for r in range(4): e(f"v_and_b32 v{vB+4*(u&1)+r}, v{val[u>>1] + 2*(u&1) + (r>>1)}, v{(vN0, vN1)[r&1]}")
            if u > 0: sp(u-1)
        sp(7)
    else:
        for t in range(16):
            if t % 4 == 0: e(f"s_waitcnt lgkmcnt({3 - t//4})")
            bs = vB + 4 * (t & 1)
            for j in range(4): e(f"v_and_b32 v{bs+j}, v{val[t>>2] + (t&3)}, v{vM+j}")
            if t > 0: om(t-1)
        om(15)
    e("s_nop 7")
    for j in range(4): e(f"v_permlane32_swap_b32 v{vS+j}, v{vS+4+j}")
    for j in range(4): e(f"v_add_f32_dpp v{vS+j}, v{vS+4+j}, v{vS+j} {dpp('row_ror:8')}")
    if pb16:
        e(f"v_cvt_pk_bf16_f32 v{vS}, v{vS}, v{vS+1}\nv_cvt_pk_bf16_f32 v{vS+1}, v{vS+2}, v{vS+3}")
        e(f"v_min_u32 v{vS}, -2, v{vS}\nv_min_u32 v{vS+1}, -2, v{vS+1}")
    else:
        for j in range(4): e(f"v_and_b32 v{vS+j}, -2, v{vS+j}")
    if defer or batchB: e(f"s_cmp_eq_u32 s{sWave}, {NW}\ns_cbranch_scc1 L_h_projret")
    e("s_mov_b32 exec_lo, 0x00ff00ff\ns_mov_b32 exec_hi, 0x00ff00ff")
    PW = "dwordx2" if pb16 else "dwordx4"; PN = 2 if pb16 else 4
    e(f"buffer_store_{PW} {vr(vS, PN)}, v{vSt}, s[{sWS}:{sWS+3}], s{sP if swp else sRow} offen sc1")
    e("s_mov_b64 exec, -1")
    if not (defer or batchB): e(f"s_cmp_eq_u32 s{sWave}, {NW}\ns_cbranch_scc1 L_h_projret")
    stamp(4)
    if clk: e(f"s_memtime s[{sSt+4}:{sSt+5}]\ns_waitcnt lgkmcnt(0)\ns_sub_u32 s{sIt}, s{sSt+4}, s{sSt+2}\ns_mov_b64 s[{sSt+2}:{sSt+3}], s[{sSt+6}:{sSt+7}]\ns_mov_b64 s[{sSt+4}:{sSt+5}], s[{sSt+8}:{sSt+9}]")
    if "e" in abl: e("s_branch L_done")
    if "B" in abl: e("s_bitcmp1_b32 s2, 0\ns_cbranch_scc1 L_done")
    if "A" in abl: e("s_bitcmp0_b32 s2, 0\ns_cbranch_scc1 L_done")
    L_WT = 2816
    def mlpoll():
        e("L_pollml:")
        e(f"v_or_b32 v{vT}, v{vML}, v{vML+1}\nv_and_b32 v{vT}, 1, v{vT}\nv_cmp_eq_u32 vcc, 1, v{vT}")
        e("s_and_b64 exec, exec, vcc\ns_cbranch_scc0 L_mlok")
        if psl: e(f"s_sleep {psl}")
        e(f"buffer_load_dwordx2 {vr(vML, 2)}, v{vRow}, s[{sWS}:{sWS+3}], s{sRed} offen offset:{PLEN} sc1")
        e("s_waitcnt vmcnt(0)\ns_branch L_pollml")
        e("L_mlok:\ns_mov_b64 exec, -1")
    def weights():
        e(f"v_max_f32_dpp v{vP0}, v{vML+1}, v{vML+1} {dpp('quad_perm:[1,0,3,2]')}")
        e(f"v_sub_f32 v{vP0}, v{vML+1}, v{vP0}\nv_mul_f32 v{vP0}, s{sCs}, v{vP0}\nv_exp_f32 v{vP0}, v{vP0}\ns_nop 0")
        e(f"v_mul_f32 v{vP1}, v{vP0}, v{vML}\ns_nop 1")
        e(f"v_add_f32_dpp v{vP1}, v{vP1}, v{vP1} {dpp('quad_perm:[1,0,3,2]')}")
        e(f"v_rcp_f32 v{vP1}, v{vP1}\ns_nop 0")
        e(f"v_mul_f32 v{vP0}, v{vP0}, v{vP1}")
    if hml:
        e("s_barrier")
        e(f"buffer_load_{PW} {vr(vB+4 if dpoll else vB, PN)}, v{vRow}, s[{sWS}:{sWS+3}], s{sRed2} offen sc1")
        e(f"ds_read_b32 v{vP0}, v{vA8} offset:{L_WT}")
        e(f"v_lshrrev_b32 v{vT2}, 3, v{vLane}\nv_add_u32 v{vT2}, s{sOut}, v{vT2}\ns_waitcnt lgkmcnt(0)")
    else:
        if not mlearly: e(f"buffer_load_dwordx2 {vr(vML, 2)}, v{vRow}, s[{sWS}:{sWS+3}], s{sRed} offen offset:{PLEN} sc1\ns_waitcnt vmcnt(0)")
        e("s_waitcnt vmcnt(1)")
        mlpoll()
        e(f"buffer_load_{PW} {vr(vB, PN)}, v{vRow}, s[{sWS}:{sWS+3}], s{sRed2} offen sc1")
        e(f"v_lshrrev_b32 v{vT2}, 3, v{vLane}\nv_add_u32 v{vT2}, s{sOut}, v{vT2}")
        weights()
    PLD = f"buffer_load_{PW} {vr(vB+4 if dpoll else vB, PN)}, v{vRow}, s[{sWS}:{sWS+3}], s{sRed2} offen sc1"
    if dpoll:
        assert pb16 and hml
        e("s_waitcnt vmcnt(0)")
        e(f"v_max_u32 v{vT}, v{vB+4}, v{vB+5}\nv_cmp_eq_u32 vcc, -1, v{vT}\ns_and_b64 exec, exec, vcc\ns_cbranch_scc0 L_pok")
        e(PLD)
        e(f"L_poll:\ns_sleep {dpoll}\n" + PLD + "\ns_waitcnt vmcnt(1)")
        e(f"v_max_u32 v{vT}, v{vB+4}, v{vB+5}\nv_cmp_eq_u32 vcc, -1, v{vT}\ns_and_b64 exec, exec, vcc\ns_cbranch_scc1 L_poll")
        e("L_pok:\ns_mov_b64 exec, -1")
        e(f"v_and_b32 v{vB+3}, 0xffff0000, v{vB+5}\nv_lshlrev_b32 v{vB+2}, 16, v{vB+5}\nv_and_b32 v{vB+1}, 0xffff0000, v{vB+4}\nv_lshlrev_b32 v{vB}, 16, v{vB+4}")
    else:
        e("L_poll:\ns_waitcnt vmcnt(0)")
        if pb16: e(f"v_max_u32 v{vT}, v{vB}, v{vB+1}\nv_cmp_eq_u32 vcc, -1, v{vT}")
        else: e(f"v_or3_b32 v{vT}, v{vB}, v{vB+1}, v{vB+2}\nv_or_b32 v{vT}, v{vT}, v{vB+3}\nv_and_b32 v{vT}, 1, v{vT}\nv_cmp_eq_u32 vcc, 1, v{vT}")
        e("s_and_b64 exec, exec, vcc\ns_cbranch_scc0 L_pok")
        if psl2: e(f"s_sleep {psl2}")
        e(PLD)
        e("s_branch L_poll")
        e("L_pok:\ns_mov_b64 exec, -1")
        if pb16:
            e(f"v_and_b32 v{vB+3}, 0xffff0000, v{vB+1}\nv_lshlrev_b32 v{vB+2}, 16, v{vB+1}\nv_and_b32 v{vB+1}, 0xffff0000, v{vB}\nv_lshlrev_b32 v{vB}, 16, v{vB}")
    for j in range(4): e(f"v_mul_f32 v{vB+j}, v{vB+j}, v{vP0}")
    e("s_nop 0")
    e(f"v_permlane16_swap_b32 v{vB}, v{vB+1}\nv_permlane16_swap_b32 v{vB+2}, v{vB+3}\ns_nop 0")
    e(f"v_add_f32 v{vB}, v{vB}, v{vB+1}\nv_add_f32 v{vB+2}, v{vB+2}, v{vB+3}\ns_nop 1")
    e(f"v_permlane32_swap_b32 v{vB}, v{vB+2}\ns_nop 1")
    e(f"v_add_f32 v{vB}, v{vB}, v{vB+2}\ns_nop 1")
    for ctl in ("row_ror:8", "row_ror:4", "row_ror:2"):
        e(f"v_add_f32_dpp v{vB}, v{vB}, v{vB} {dpp(ctl)}\ns_nop 1")
    e(f"v_add_f32_dpp v{vB}, v{vB}, v{vB} {dpp('row_ror:1')}")
    e(f"v_cvt_pk_bf16_f32 v{vB}, v{vB}, v{vB}")
    e("s_mov_b32 exec_lo, 0x00010001\ns_mov_b32 exec_hi, 0x00010001")
    e(f"global_store_short v{vT2}, v{vB}, s[24:25] {opol}")
    if pst == 9: stamp(1); e("s_waitcnt vmcnt(0)"); stamp(2)
    e("L_done:")
    if dbgst:
        stamp(5)
        e(f"s_cmp_lg_u32 s{sWave}, 0\ns_cbranch_scc1 L_end\ns_cmp_lg_u32 s2, 36\ns_cbranch_scc1 L_end\ns_waitcnt lgkmcnt(0)\ns_mov_b64 exec, 1")
        for i in range(1, 6): e(f"s_sub_u32 s{sT0}, s{sSt+2*i}, s{sSt}\nv_mov_b32 v{vT}, s{sT0}\nglobal_store_dword v{vZ}, v{vT}, s[26:27] offset:{4*i}")
        for i, r in enumerate([6, 8, 16, 18, 28]): e(f"s_lshr_b32 s{sT0}, s{r}, 21\ns_lshl_b32 s{sT1}, s{r+1}, 11\ns_or_b32 s{sT0}, s{sT0}, s{sT1}\ns_and_b32 s{sT0}, s{sT0}, 0xffff\nv_mov_b32 v{vT}, s{sT0}\nglobal_store_dword v{vZ}, v{vT}, s[26:27] offset:{32+4*i}")
    elif probe is not None:
        stamp(5)
        if pwg is not None: e(f"s_cmp_lg_u32 s2, {pwg}\ns_cbranch_scc1 L_end\ns_cmp_lg_u32 s{sWave}, 0\ns_cbranch_scc1 L_end")
        e("s_waitcnt lgkmcnt(0)")
        e(f"s_sub_u32 s{sT0}, s{sSt+2*probe}, s{sSt+2*pref}")
        if cyc: e(f"s_sub_u32 s{sT1}, s98, s96\ns_mov_b64 exec, -1\nv_cvt_f32_u32 v{vT}, s{sT0}\nv_cvt_f32_u32 v{vT2}, s{sT1}\nv_rcp_f32 v{vT}, v{vT}\ns_nop 1\nv_mul_f32 v{vT}, v{vT}, v{vT2}\nv_mul_f32 v{vT}, 0x42c80000, v{vT}\nv_cvt_u32_f32 v{vT}, v{vT}\ns_nop 1\nv_readfirstlane_b32 s{sT0}, v{vT}\ns_nop 4")
        if pavg:
            e(f"s_cmp_lg_u32 s{sWave}, 0\ns_cbranch_scc1 L_end\ns_lshl_b32 s{sT1}, s{sT0}, 9\ns_add_u32 s{sT1}, s{sT1}, 1\ns_mov_b32 s{sT2}, s{sT1}\ns_atomic_add s{sT1}, s[26:27], 32 glc\ns_waitcnt lgkmcnt(0)\ns_add_u32 s{sT1}, s{sT1}, s{sT2}\ns_and_b32 s{sT2}, s{sT1}, 511\ns_cmp_lg_u32 s{sT2}, 256\ns_cbranch_scc1 L_end\ns_lshr_b32 s{sT0}, s{sT1}, 17")
        e(f"s_sub_i32 s{sT0}, s{sT0}, {pbase*100}\ns_max_i32 s{sT0}, s{sT0}, 0\ns_mul_i32 s{sT0}, s{sT0}, {pamp}\ns_min_i32 s{sT0}, s{sT0}, 100000\ns_add_u32 s{sT0}, s{sT0}, 15000")
        e(f"L_spin:\ns_sleep 2\ns_memrealtime s[62:63]\ns_waitcnt lgkmcnt(0)\ns_sub_u32 s{sT1}, s62, s{sSt}\ns_cmp_lt_u32 s{sT1}, s{sT0}\ns_cbranch_scc1 L_spin")
    elif stamps:
        stamp(5)
        e(f"s_cmp_lg_u32 s{sWave}, {4 if hst else 0}\ns_cbranch_scc1 L_end\nL_wst:")
        e("s_waitcnt lgkmcnt(0)")
        e("s_mov_b64 exec, 1\ns_add_u32 s28, s28, 0x20000000\ns_addc_u32 s29, s29, 0")
        e(f"s_lshl_b32 s{sT0}, s2, 6\nv_mov_b32 v{vT}, s{sT0}\ns_getreg_b32 s{sT0}, hwreg(HW_REG_XCC_ID)")
        for i in range(12): e(f"v_mov_b32 v{vR+i}, s{sSt+i}")
        e(f"v_mov_b32 v{vR+12}, s{sIt}\nv_mov_b32 v{vR+13}, 0\nv_mov_b32 v{vR+14}, s{sT0}\nv_mov_b32 v{vR+15}, 0")
        for i in range(4): e(f"global_store_dwordx4 v{vT}, {vr(vR+4*i)}, s[28:29] offset:{16*i}")
        if trace:
            e(f"s_mov_b64 exec, -1\ns_lshl_b32 s{sT0}, s2, 9\ns_add_u32 s{sT0}, s{sT0}, 0x800000\nv_lshl_add_u32 v{vT2}, v{vLane}, 2, s{sT0}")
            e(f"global_store_dword v{vT2}, v{vTr}, s[28:29]\nglobal_store_dword v{vT2}, v{vTr+1}, s[28:29] offset:256")
    e("s_endpgm")
    e("L_tail_end:")
    def wread(t):
        for cb in range(2):
            if sm: e(f"ds_read_b128 {vr(vW+8*(2*(t>>1)+cb)+4*(t&1))}, v{vWb if t & 1 else vWa} offset:{L_WO + (t>>1)*2048 + cb*128}")
            else: e(f"ds_read_b128 {vr(vW+4*(2*t+cb))}, v{vWa} offset:{L_WO + t*1024 + cb*128}")
    e("L_wpiece:")
    for p in range(8):
        if p < 7: e(f"s_cmp_lg_u32 s{sT0}, {p}\ns_cbranch_scc1 L_wp{p+1}")
        wread(2*p); wread(2*p+1)
        e("s_branch L_vret")
        if p < 7: e(f"L_wp{p+1}:")
    e("L_v2k:")
    if pst == 8: stamp(2)
    if pst == 1: stamp(1)
    e(f"v_and_b32 v{vT2}, 15, v{vLane}\nv_lshlrev_b32 v{vT2}, 4, v{vT2}")
    e(f"ds_read_b128 {vr(vQ)}, v{vT2} offset:{L_QT}")
    e(f"s_mov_b32 s{sPh}, 1\ns_mov_b32 s{sEnd}, 24")
    e(f"s_mov_b32 s{sNx}, s8\ns_mov_b32 s{sNx+1}, s9")
    e(f"v_mov_b32 v{vRm}, 0xff7fffff\nv_subrev_u32 v{vSA}, 1024, v{vSA}")
    e(f"s_lshl_b32 s{sT0}, s{sWave}, 2\nv_mov_b32 v{vT2}, s{sT0}")
    wavered(vL, "add", s0)
    e(f"ds_write_b32 v{vT2}, v{vL} offset:{L_LS}")
    e("s_mov_b32 exec_lo, 0x00ff00ff\ns_mov_b32 exec_hi, 0xff00ff00")
    e(f"ds_write_b128 v{vOw}, {vr(vO)} offset:{L_OB}")
    e("s_mov_b64 exec, -1")
    e(".p2align 6\nL_kloop:")
    switch()
    for st in range(2):
        e("s_barrier"); rdflag(); useflag()
        for g in range(2):
            r0 = 8 * st + 4 * g
            e("s_waitcnt vmcnt(12)")
            dots([ring(r0+t) for t in range(4)], kdst(st, g))
            pair(r0)
            red(st, g, 0)
            pair(r0+2)
    e(f"v_add_u32 v{vSA}, 256, v{vSA}")
    e(f"s_cmp_lt_u32 s{sIt}, s{sEnd}\ns_cbranch_scc1 L_kloop")
    if pst == 1: stamp(2)
    e(f"s_mov_b32 s{sPh}, 2\ns_mov_b32 s{sEnd}, 39\ns_add_u32 s{sNOff}, s{sOffA}, {15*0x10000}")
    e("s_branch L_k2v")
    e("L_helper:")
    e(f"s_setprio {hprio}")
    ids()
    if warm0 == 1:
        e(f"s_getpc_b64 s[30:31]\nL_pc0:\ns_sub_u32 s30, s30, L_pc0-{KN}\ns_subb_u32 s31, s31, 0\nv_lshlrev_b32 v{vT2}, 7, v{vLane}\nglobal_load_dword v{vRm}, v{vT2}, s[30:31]\nv_add_u32 v{vT2}, 8192, v{vT2}\nglobal_load_dword v{vRm}, v{vT2}, s[30:31]")
    e(f"v_mov_b32 v{vT}, {imask}\nds_write_b32 v{vZ}, v{vT} offset:{L_FLAG}")
    for j in range(4): e(f"v_mov_b32 v{vB+j}, -1")
    e(f"v_lshlrev_b32 v{vKV}, 4, v{vLane}")
    e("s_waitcnt lgkmcnt(0)")
    e(f"s_mov_b32 s{sWS}, s28\ns_mov_b32 s{sWS+1}, s29")
    e(f"s_mov_b32 s{sW}, s22\ns_mov_b32 s{sW+1}, s23")
    e("s_cmp_lg_u32 s2, 0\ns_cbranch_scc1 L_h_noinit")
    e(f"v_lshlrev_b32 v{vT2}, 8, v{vLane}")
    if init2: e("s_mov_b32 exec_hi, 0")
    for i in range(1 if init2 else 5):
        e(f"s_mov_b32 s{sT0}, {i*0x4000}\nbuffer_store_dword v{vZ}, v{vT2}, s[{sWS}:{sWS+3}], s{sT0} offen sc1")
    e("s_waitcnt vmcnt(0)")
    e(f"s_mov_b64 exec, -1\ns_mov_b32 s64, 1\ns_atomic_add s64, s[26:27], 0")
    e("L_h_noinit:")
    def clears():
        if init2:
            e(f"s_lshl_b32 s{sT0}, s2, 8\ns_add_u32 s{sT0}, s{sT0}, {WS_FB}\ns_mov_b64 exec, 1\nbuffer_store_dword v{vZ}, v{vZ}, s[{sWS}:{sWS+3}], s{sT0} offen sc1\ns_mov_b64 exec, -1")
        for r in range(2):
            if "n" not in abl:
                if r == 0 or not bflag:
                    if swp:
                        e(f"s_lshl_b32 s{sT0}, s{sReg}, 10\nv_add_u32 v{vSt}, s{sT0}, v{vKV}\ns_mov_b32 s{sP}, {WS_P2}")
                        swz(vSt, vT)
                        e(f"buffer_store_dwordx4 {vr(vB)}, v{vSt}, s[{sWS}:{sWS+3}], s{sP} offen sc1")
                    else: e(f"buffer_store_dwordx4 {vr(vB)}, v{vKV}, s[{sWS}:{sWS+3}], s{sRow} offen sc1")
                    if not pb16: e(f"buffer_store_dwordx4 {vr(vB)}, v{vKV}, s[{sWS}:{sWS+3}], s{sRow} offen offset:1024 sc1")
                e("s_mov_b64 exec, 0xff")
                e(f"buffer_store_dwordx4 {vr(vB)}, v{vKV}, s[{sWS}:{sWS+3}], s{sRow} offen offset:{PLEN} sc1")
                e("s_mov_b64 exec, -1")
            if r == 0: e(f"s_add_u32 s{sRow}, s{sRow}, {256*ROW}")
    if not lateclr: clears()
    consts(None); consts2(None)
    e(f"s_lshl_b32 s{sOff}, s{sH}, 14\ns_add_u32 s{sOff}, s{sOff}, {WS_QX}")
    e(f"s_lshl_b32 s{sT1}, s{sJ}, 11\ns_add_u32 s{sT1}, s{sT1}, s{sOff}")
    e(f"s_lshl_b32 s{sNOff}, s{sH}, 8")
    if preread:
        e(f"buffer_load_dwordx4 {vr(vW)}, v{vKV}, s[{sWS}:{sWS+3}], s{sT1} offen\nbuffer_load_dwordx4 {vr(vW)}, v{vKV}, s[{sWS}:{sWS+3}], s{sT1} offen offset:1024")
    e(f"v_and_b32 v{vT2}, 31, v{vLane}\nv_lshlrev_b32 v{vP0}, 3, v{vT2}\nv_lshlrev_b32 v{vRow}, 8, v{vT2}\nv_lshlrev_b32 v{vT2}, 4, v{vT2}\nv_lshrrev_b32 v{vT}, 5, v{vLane}\nv_lshl_add_u32 v{vT2}, v{vT}, 11, v{vT2}")
    e(f"s_lshl_b32 s{sT0}, s{sB}, 9\nv_add_u32 v{vT2}, s{sT0}, v{vT2}")
    e(f"v_lshl_add_u32 v{vP0}, v{vT}, 8, v{vP0}")
    e(f"v_mov_b32 v{vP1}, s{sNOff}")
    if swq:
        e(f"v_add_u32 v{vT2}, s{sOff}, v{vT2}\nv_add_u32 v{vRm}, s{sT1}, v{vKV}")
        swz(vT2, vT); swz(vRm, vT)
        e(f"v_xor_b32 v{vSA}, 0x100, v{vRm}")
    e("s_barrier")
    hstamp(1)
    if lateclr: clears()
    for w in range(4):
        for u in range(2): e(f"ds_read_b128 {vr(vR+8*w+4*u)}, v{vKV} offset:{L_QP + w*2048 + u*1024}")
    e(f"global_load_dword v{vT}, v{vZ}, s[26:27] sc1")
    e("s_waitcnt lgkmcnt(0)")
    for i in range(16): e(f"v_add_f32 v{vR+i}, v{vR+i}, v{vR+16+i}")
    for i in range(8): e(f"v_add_f32 v{vR+i}, v{vR+i}, v{vR+8+i}")
    if "x" not in abl:
        if swq:
            e(f"buffer_store_dwordx4 {vr(vR)}, v{vRm}, s[{sWS}:{sWS+3}], 0 offen sc1")
            e(f"buffer_store_dwordx4 {vr(vR+4)}, v{vSA}, s[{sWS}:{sWS+3}], 0 offen sc1")
        else:
            e(f"buffer_store_dwordx4 {vr(vR)}, v{vKV}, s[{sWS}:{sWS+3}], s{sT1} offen sc1")
            if not qhalf: e(f"buffer_store_dwordx4 {vr(vR+4)}, v{vKV}, s[{sWS}:{sWS+3}], s{sT1} offen offset:1024 sc1")
    hstamp(2)
    e("s_waitcnt vmcnt(0)")
    e(f"L_h_flag:\nv_cmp_ne_u32 vcc, 0, v{vT}\ns_cbranch_vccnz L_h_flagok\nglobal_load_dword v{vT}, v{vZ}, s[26:27] sc1\ns_waitcnt vmcnt(0)\ns_branch L_h_flag\nL_h_flagok:")
    hstamp(3)
    slp = f"s_sleep {qsl}\n" if qsl else ""
    if qmode == "v":
        e(f"s_mov_b32 s65, 1\ns_atomic_add s65, s[28:29], s{sNOff}")
        if nb: e("s_barrier")
        if "p" not in abl: e(f"s_branch L_h_qc1\nL_h_qc:\n{slp}L_h_qc1:\nglobal_load_dword v{vT}, v{vP1}, s[28:29] sc1\ns_waitcnt vmcnt(0)\nv_cmp_ne_u32 vcc, 8, v{vT}\ns_cbranch_vccnz L_h_qc")
    else:
        e(f"s_mov_b32 s65, 1\ns_atomic_add s65, s[28:29], s{sNOff} glc")
        if nb: e("s_barrier")
        e(f"s_waitcnt lgkmcnt(0)\ns_cmp_eq_u32 s65, 7\ns_cbranch_scc1 L_h_qcok")
        if nb: e("s_branch L_h_qc1")
        e(f"L_h_qc:\n{slp}L_h_qc1:")
        if qmode == "s": e(f"s_load_dword s65, s[28:29], s{sNOff} glc")
        else: e(f"s_mov_b32 s65, 0\ns_atomic_add s65, s[28:29], s{sNOff} glc")
        e(f"s_waitcnt lgkmcnt(0)\ns_cmp_lg_u32 s65, 8\ns_cbranch_scc1 L_h_qc\nL_h_qcok:")
    hstamp(4)
    for i in range(4):
        if swq: e(f"buffer_load_dwordx4 {vr(vR+4*i)}, v{vT2}, s[{sWS}:{sWS+3}], 0 offen offset:{1024*i} sc1"); continue
        if qhalf:
            if i == 0: e(f"v_lshrrev_b32 v{vT2}, 4, v{vLane}\nv_lshlrev_b32 v{vT2}, 11, v{vT2}\nv_and_b32 v{vT}, 15, v{vLane}\nv_lshl_add_u32 v{vT2}, v{vT}, 4, v{vT2}\ns_lshl_b32 s{sT0}, s{sB}, 8\nv_add_u32 v{vT2}, s{sT0}, v{vT2}")
            if i & 1 == 0: e(f"buffer_load_dwordx4 {vr(vR+4*i)}, v{vT2}, s[{sWS}:{sWS+3}], s{sOff} offen sc1")
        elif "r" not in abl: e(f"buffer_load_dwordx4 {vr(vR+4*i)}, v{vT2}, s[{sWS}:{sWS+3}], s{sOff} offen sc1")
        if i < 3: e(f"s_add_u32 s{sOff}, s{sOff}, 4096")
    e("s_waitcnt vmcnt(0)")
    for j in range(4): e(f"v_add_f32 v{vR+j}, v{vR+j}, v{vR+4+j}")
    for j in range(4): e(f"v_add_f32 v{vR+8+j}, v{vR+8+j}, v{vR+12+j}")
    e("s_nop 1")
    for j in range(4): e(f"v_permlane32_swap_b32 v{vR+j}, v{vR+8+j}")
    e("s_nop 1")
    for j in range(4): e(f"v_add_f32 v{vR+j}, v{vR+j}, v{vR+8+j}")
    e(f"v_cvt_pk_bf16_f32 v{vR}, v{vR}, v{vR+1}\nv_cvt_pk_bf16_f32 v{vR+1}, v{vR+2}, v{vR+3}")
    e(f"ds_write_b64 v{vP0}, {vr(vR, 2)} offset:{L_QT}")
    hstamp(5)
    e(f"s_mov_b32 s{sIt}, 3")
    if fg < 8:
        par = lambda v: bin(v).count("1") & 1
        def sub(x, k):
            if fg == 4: return par(x & [2, 5, 4, 3, 7, 2, 4, 7][k])
            d = [1, 3, 5, 7, 1, 2, 3, 5][k]
            reps = sorted({min(y, y ^ d) for y in range(8)})
            return reps.index(min(x, x ^ d))
        T = [sum(sub(x, k) << (2*k) for k in range(8)) for x in range(8)]
        e(f"s_mov_b32 s88, {T[0] | T[1] << 16}\ns_mov_b32 s89, {T[2] | T[3] << 16}\ns_mov_b32 s90, {T[4] | T[5] << 16}\ns_mov_b32 s91, {T[6] | T[7] << 16}")
        e(f"s_bitcmp1_b32 s2, 2\ns_cselect_b64 s[88:89], s[90:91], s[88:89]\ns_and_b32 s90, s2, 3\ns_lshl_b32 s90, s90, 4\ns_lshr_b64 s[88:89], s[88:89], s90")
    if sched:
        sm_ = sum(1 << i for i in range(40) if sched[i] == "1")
        e(f"s_mov_b32 s86, {sm_ & 0xffffffff}\ns_mov_b32 s87, {sm_ >> 32}\ns_mov_b32 s65, 0")
    vNew, vOld, vMb, vLn = vML, vML+1, vOw, vSA
    if hlp:
        e(f"s_mov_b32 s{sPk}, 0\ns_mov_b32 s{sPkB}, 0\ns_mov_b32 s{sRq}, 0\ns_mov_b32 s{sRk}, 0\nv_mov_b32 v{vOld}, 0\nv_mov_b32 v{vNew}, 0")
        e(f"s_lshl_b32 s{sReg}, s{sReg}, 8\ns_bitset1_b32 s{sReg}, 31")
        e(f"v_and_b32 v{vMb}, 31, v{vLane}\nv_lshlrev_b32 v{vLn}, 7, v{vMb}\nv_lshlrev_b32 v{vMb}, 2, v{vMb}")
        if hpat:
            e(f"v_and_b32 v{vLn}, 3, v{vLane}\nv_lshlrev_b32 v{vLn}, 7, v{vLn}\nv_bfe_u32 v{vT}, v{vLane}, 2, 1\nv_lshl_add_u32 v{vLn}, v{vT}, 15, v{vLn}\nv_bfe_u32 v{vT}, v{vLane}, 3, 2\nv_lshl_add_u32 v{vLn}, v{vT}, 9, v{vLn}")
            e(f"s_and_b32 s{sT0}, s2, 15\ns_lshl_b32 s{sT0}, s{sT0}, 11\ns_lshr_b32 s{sT1}, s2, 4\ns_lshl_b32 s{sT1}, s{sT1}, 16\ns_add_u32 s{sT0}, s{sT0}, s{sT1}\nv_add_u32 v{vLn}, s{sT0}, v{vLn}")
    def mask(d, n=8): return sum(1 << i for i in range(n) if ((i+1)*d)//n != (i*d)//n)
    tab = sum(mask(d) << (8*d) for d in range(8))
    e(f"s_lshr_b32 s{sNOff}, s2, 3\ns_and_b32 s{sOut}, s2, 7\ns_mov_b32 s{sInt}, {off*8}\ns_mov_b32 s{sMk}, 0\ns_mov_b32 s91, 0\ns_mov_b32 s84, {-jn*jnd}\ns_mov_b32 s{sNx}, {tab & 0xffffffff}\ns_mov_b32 s{sNx+1}, {tab >> 32}")
    e(f"s_lshl_b32 s{sOff}, s{sH}, 17\ns_mov_b32 s{sLd}, {L_WO}")
    e("s_waitcnt lgkmcnt(0)")
    assert D1 + 8 < PB and PB + 4 < D2 and D2 + 8 < EW
    def dma8(lab, pad):
        e(f"s_cmp_eq_u32 s{sPh}, 0\ns_cbranch_scc1 {lab}")
        for i in range(2):
            e(f"s_mov_b32 m0, s{sLd}\ns_add_u32 s{sLd}, s{sLd}, {4096 + (128 if pad and i else 0)}")
            for t in range(4):
                e(f"buffer_load_dwordx4 v{vKV}, s[{sW}:{sW+3}], s{sOff} offen offset:{t*1024} {wopol} lds")
            e(f"s_add_u32 s{sOff}, s{sOff}, 4096")
        e(f"{lab}:")
    def calcml(dst):
        e(f"ds_read_b128 {vr(vS)}, v{vZ} offset:{L_LS}\nds_read_b128 {vr(vS+4)}, v{vZ} offset:{L_MX}\ns_waitcnt lgkmcnt(0)")
        e(f"v_add_f32 v{s0}, v{s0}, v{s1}\nv_add_f32 v{s2_}, v{s2_}, v{s3}\nv_max3_f32 v{dst+1}, v{vS+4}, v{vS+5}, v{vS+6}")
        e(f"v_add_f32 v{dst}, v{s0}, v{s2_}\nv_max_f32 v{dst+1}, v{dst+1}, v{vS+7}")
        e(f"v_and_b32 v{dst}, -2, v{dst}\nv_and_b32 v{dst+1}, -2, v{dst+1}")
    def putml(src):
        e(f"s_mov_b64 exec, {0xffff if mlfull else 1}")
        e(f"buffer_store_dwordx2 {vr(src, 2)}, v{vA8}, s[{sWS}:{sWS+3}], s{sRow} offen offset:{PLEN} sc1")
        e("s_mov_b64 exec, -1")
    def pubml(): calcml(vL); putml(vL)
    def putB():
        e("s_mov_b32 exec_lo, 0x00ff00ff\ns_mov_b32 exec_hi, 0x00ff00ff")
        for k in range(4):
            if swp:
                e(f"buffer_store_{PW} {vr(vR+PN*k, PN)}, v{vSt}, s[{sWS}:{sWS+3}], s{sP} offen sc1")
                if k < 3: e(f"v_xor_b32 v{vSt}, {0x10280 if k == 1 else 0x10200}, v{vSt}")
            else: e(f"buffer_store_{PW} {vr(vR+PN*k, PN)}, v{vSt}, s[{sWS}:{sWS+3}], s{sRow} offen offset:{k*(512>>hs)} sc1")
        e("s_mov_b64 exec, -1")
    e("L_h_loop:")
    e("s_barrier")
    lf = fg.bit_length() - 1
    def cp_addr(dk, dst, base):
        e((f"s_add_u32 s{sT0}, s65, {dk}" if sched else f"s_add_u32 s{sT0}, s{sIt}, {dk-3}"))
        e(f"s_mul_i32 s{dst}, s{sT0}, s{sOut}\ns_add_u32 s{dst}, s{dst}, s{sNOff}\ns_and_b32 s{dst}, s{dst}, 31")
        if rw:
            nl = 5 - rw
            if dk == 0: e(f"s_lshr_b32 s93, s{dst}, {nl}\ns_xor_b32 s93, s93, s{sT0}\ns_and_b32 s93, s93, {(1 << rw) - 1}")
            e(f"s_and_b32 s{dst}, s{dst}, {(1 << nl) - 1}\ns_lshl_b32 s{base}, s{sT0}, {nl}\ns_add_u32 s{dst}, s{dst}, s{base}\ns_mul_i32 s{dst}, s{dst}, {37*256}\ns_and_b32 s{dst}, s{dst}, 0xff00\ns_add_u32 s{dst}, s{dst}, {WS_FB}")
            e(f"s_lshr_b32 s{base}, s{sT0}, {8 - nl}\ns_lshl_b32 s{base}, s{base}, 3")
            return
        e(f"s_lshl_b32 s{base}, s{sT0}, {8 - lf}\ns_add_u32 s{dst}, s{dst}, s{base}\ns_and_b32 s{dst}, s{dst}, 255\ns_lshl_b32 s{dst}, s{dst}, 8\ns_add_u32 s{dst}, s{dst}, {WS_FB}")
        e(f"s_andn2_b32 s{base}, s{sT0}, {fg-1}")
    def request():
        e(f"s_sub_i32 s{sT0}, s{sPk}, s{sPkB}\ns_cmp_lt_i32 s{sT0}, {pt}\ns_cbranch_scc1 L_h_norq")
        e(f"s_mov_b32 s{sMk}, {jmax}")
        e(f"s_cmp_ge_u32 s{sIt}, 24\ns_cselect_b32 s{sT0}, 2, 1\ns_cmp_lt_u32 s{sIt}, 8\ns_cselect_b32 s{sT0}, 0, s{sT0}\ns_cmp_le_u32 s{sT0}, s{sRq}\ns_cbranch_scc1 L_h_norq")
        e(f"s_mov_b32 s{sRq}, s{sT0}\ns_lshl_b32 s{sT1}, s{sT0}, 2\ns_mov_b32 s{sPk}, 1\ns_atomic_add s{sPk}, s[26:27], s{sT1} glc\ns_waitcnt lgkmcnt(0)")
        e(f"s_cmp_ge_u32 s{sPk}, {hcap}\ns_cbranch_scc1 L_h_norq")
        e(f"s_add_u32 s{sT0}, s{sT0}, 1\ns_lshl_b32 s{sT0}, s{sT0}, 4\ns_add_u32 s{sPk}, s{sPk}, s{sT0}\ns_lshl_b32 s{sT1}, s{sPk}, 2\ns_or_b32 s{sPk}, s{sReg}, s{sIt}\ns_atomic_or s{sPk}, s[26:27], s{sT1} glc\ns_waitcnt lgkmcnt(0)")
        e(f"L_h_norq:\ns_mov_b32 s{sPk}, 0\ns_mov_b32 s{sPkB}, 0")
    if hlp:
        if not pk2: e("s_waitcnt lgkmcnt(0)"); request()
        if ck3: e(f"s_cmp_lg_u32 s{sIt}, 3\ns_cbranch_scc1 L_h_c0\nbuffer_load_dword v{vRm}, v{vRow}, s[{sWS}:{sWS+3}], 0 offen sc1\nL_h_c0:")
        if mbs: e(f"s_bitcmp1_b32 s{sIt}, 0\ns_cbranch_scc1 L_h_nomb")
        e(f"global_load_dword v{vNew}, v{vMb}, s[26:27] offset:128 sc1")
        if mbs: e("L_h_nomb:")
    if dummy:
        for dd in range(dummy):
            e(f"s_lshl_b32 s93, s{sIt}, 5\ns_add_u32 s93, s93, s{sNOff}\ns_add_u32 s93, s93, {64*dd}\ns_and_b32 s93, s93, 255\ns_lshl_b32 s93, s93, 8\ns_andn2_b32 s93, s93, {((1 << dsh) - 1) << 8}\ns_add_u32 s93, s93, {WS_FB+4}")
            if dk_ == "a": e(f"s_atomic_add s{94+dd}, s[28:29], s93 glc")
            elif dk_ == "n": e(f"s_atomic_add s{94+dd}, s[28:29], s93")
            elif dk_ == "z": e(f"s_mov_b32 s{94+dd}, 0\ns_atomic_add s{94+dd}, s[28:29], s93 glc")
            elif dk_ == "l": e(f"s_load_dword s{94+dd}, s[28:29], s93 glc")
            elif dk_ == "v": e(f"s_mov_b64 exec, 1\nbuffer_load_dword v{vNmc}, v{vZ}, s[{sWS}:{sWS+3}], s93 offen sc1\ns_mov_b64 exec, -1")
            elif dk_ == "s": e(f"s_mov_b64 exec, 1\nbuffer_store_dword v{vZ}, v{vZ}, s[{sWS}:{sWS+3}], s93 offen sc1\ns_mov_b64 exec, -1")
            elif dk_ == "p": e(f"s_mov_b64 exec, 1\nbuffer_store_dword v{vZ}, v{vZ}, s[{sWS}:{sWS+3}], s93 offen\ns_mov_b64 exec, -1")
            elif dk_ == "w": e(f"s_mov_b64 exec, 1\nbuffer_atomic_add v{vNmc}, v{vZ}, s[{sWS}:{sWS+3}], s93 offen sc0\ns_mov_b64 exec, -1")
            elif dk_ == "t": e(f"s_mov_b64 exec, 1\nbuffer_atomic_add v{vNmc}, v{vZ}, s[{sWS}:{sWS+3}], s93 offen sc0 nt\ns_mov_b64 exec, -1")
    if rr:
        e(f"s_cmp_eq_u32 s91, 0\ns_cbranch_scc1 L_h_norr\ns_load_dword s88, s[28:29], s90 glc\nL_h_norr:")
    if sched: e(f"s_bitcmp0_b64 s[86:87], s{sIt}\ns_cbranch_scc1 L_h_nocp")
    cp_addr(0, sT1, sEnd)
    if rw:
        e(f"s_cmp_eq_u32 s93, 0\ns_cselect_b32 s93, 7, 8\ns_cbranch_scc1 L_h_wr\ns_load_dword s{sT2}, s[28:29], s{sT1} glc\ns_branch L_h_rd\nL_h_wr:")
    e(f"s_mov_b32 s{sT2}, 1\ns_atomic_add s{sT2}, s[28:29], s{sT1} glc")
    if rw: e("L_h_rd:")
    if pb:
        e(f"s_mov_b32 s88, 8\ns_mov_b32 s89, 0\ns_cmp_ge_i32 s{sRk}, {pbe}\ns_cbranch_scc1 L_h_nopb\ns_sub_u32 s{sT0}, s{sIt}, {pbr[0]}\ns_cmp_ge_u32 s{sT0}, {pbr[1] - pbr[0]}\ns_cbranch_scc1 L_h_nopb")
        cp_addr(-1, 90, 89)
        e("s_load_dword s88, s[28:29], s90 glc\nL_h_nopb:")
    if hlp and pk2:
        e(f"s_cmp_lt_i32 s{sRk}, {8 - 8//fg}\ns_cbranch_scc1 L_h_nocp\ns_sub_u32 s{sT0}, s{sIt}, {pk2[0]}\ns_cmp_ge_u32 s{sT0}, {pk2[1] - pk2[0]}\ns_cbranch_scc1 L_h_nocp")
        cp_addr(pd, 92, sPkB)
        e(f"s_load_dword s{sPk}, s[28:29], s92 glc")
    if sched or pk2: e(f"L_h_nocp:")
    e(f"s_cmp_lg_u32 s{sIt}, {D2}\ns_cbranch_scc1 L_h_nosw")
    e(f"s_mov_b32 s{sW}, s12\ns_mov_b32 s{sW+1}, s13\ns_lshl_b32 s{sOff}, s{sH}, 17\ns_mov_b32 s{sLd}, {L_WO}\nL_h_nosw:")
    e(f"s_sub_u32 s{sT0}, s{sIt}, {D1}\ns_cmp_lt_u32 s{sT0}, 8\ns_cselect_b32 s{sPh}, 1, 0")
    e(f"s_sub_u32 s{sT0}, s{sIt}, {D2}\ns_cmp_lt_u32 s{sT0}, 8\ns_cselect_b32 s{sPh}, 1, s{sPh}")
    if not hlp: e(f"s_cmp_eq_u32 s{sIt}, {D1+8}\ns_cbranch_scc1 L_h_wait\ns_cmp_lg_u32 s{sIt}, {D2+8}\ns_cbranch_scc1 L_h_nowait\nL_h_wait:\ns_waitcnt vmcnt(0)\nL_h_nowait:")
    dma8("L_h_d1", False)
    e(f"s_sub_u32 s{sRed}, s{sIt}, {PB}\ns_cmp_ge_u32 s{sRed}, 4\ns_cbranch_scc1 L_h_now")
    for t in range(16): wread(t)
    e("L_h_now:")
    e("s_barrier")
    if hlp: e(f"s_waitcnt vmcnt(8)\ns_cmp_lg_u32 s{sPh}, 0\ns_cbranch_scc1 L_h_mb\ns_waitcnt vmcnt(0)\nL_h_mb:")
    dma8("L_h_d2", True)
    if rr:
        assert sched and pk2 and jn and not pb
        e(f"s_waitcnt lgkmcnt(0)\ns_cmp_eq_u32 s91, 0\ns_cbranch_scc1 L_h_norr2\ns_mov_b32 s91, 0")
        e(f"s_sub_i32 s88, s88, s89\ns_sub_i32 s88, {8 - rrk}, s88\ns_mul_i32 s88, s88, {rr}\ns_max_i32 s{sT0}, s84, 0\ns_add_i32 s{sT0}, s{sT0}, s88\ns_min_i32 s{sT0}, s{sT0}, 8")
        e(f"s_sub_i32 s84, s84, {rrd}\ns_cmp_gt_i32 s88, 0\ns_cselect_b32 s84, s{sT0}, s84")
        e(f"s_bitcmp0_b64 s[86:87], s{sIt}\ns_cbranch_scc1 L_h_mask\nL_h_norr2:")
    if sched: e("s_waitcnt lgkmcnt(0)\n" + ("" if pk2 else f"s_mov_b32 s{sRk}, 0\n") + f"s_bitcmp0_b64 s[86:87], s{sIt}\ns_cbranch_scc1 L_h_noctl")
    if rr: e(f"s_mov_b32 s90, s{sT1}\ns_mov_b32 s89, s{sEnd}")
    if hlp and pk2: e("s_waitcnt lgkmcnt(0)"); request()
    e(f"s_waitcnt lgkmcnt(0)\ns_sub_u32 s{sT2}, s{sT2}, s{sEnd}\ns_lshl_b32 s{sT2}, s{sT2}, {4 - lf}\ns_sub_i32 s{sT2}, s{sT2}, {'s93' if rw else 8 - 8//fg}\ns_mov_b32 s{sRk}, s{sT2}")
    e(f"s_mul_i32 s{sT0}, s{sT2}, {ki}\ns_add_i32 s{sInt}, s{sInt}, s{sT0}\ns_min_i32 s{sInt}, s{sInt}, {(off+imax)*8}\ns_max_i32 s{sInt}, s{sInt}, {(off-imax)*8}")
    if eg:
        e(f"s_cmp_ge_u32 s{sIt}, {eg[0]}\ns_cselect_b32 s{sT0}, {eg[1]}, {kp}\ns_cselect_b32 s30, {eg[2]}, {pcap}\ns_cselect_b32 s31, {eg[3]*8}, 0")
        e(f"s_mul_i32 s{sT0}, s{sT2}, s{sT0}\ns_add_i32 s{sT0}, s{sT0}, s{sInt}\ns_add_i32 s{sT0}, s{sT0}, s31\ns_ashr_i32 s{sT0}, s{sT0}, 6\ns_max_i32 s{sT0}, s{sT0}, 0\ns_min_i32 s{sT0}, s{sT0}, s30")
    else:
        e(f"s_mul_i32 s{sT0}, s{sT2}, {kp}\ns_add_i32 s{sT0}, s{sT0}, s{sInt}\ns_ashr_i32 s{sT0}, s{sT0}, 6\ns_max_i32 s{sT0}, s{sT0}, {pmin}\ns_min_i32 s{sT0}, s{sT0}, {pcap}")
    if boost:
        bm = sum(1 << i for i in boost[1])
        e(f"s_mov_b32 s30, {bm}\ns_bitcmp1_b32 s30, s{sIt}\ns_cselect_b32 s30, {boost[0]}, 0\ns_cmp_lt_u32 s{sIt}, 32\ns_cselect_b32 s30, s30, 0")
        if len(boost) > 2: e(f"s_cmp_ge_i32 s{sT2}, {boost[2]}\ns_cselect_b32 s30, s30, 0")
        e(f"s_add_i32 s{sT0}, s{sT0}, s30")
    if ja:
        e(f"s_cmp_ge_i32 s{sT2}, {min(2*jr-7, 8 - 8//fg)}\ns_cselect_b32 s{sEnd}, {ja}, 0\ns_cmp_lt_i32 s{sT2}, 0\ns_cselect_b32 s{sEnd}, {-jb}, s{sEnd}")
        e(f"s_add_i32 s{sMk}, s{sMk}, s{sEnd}\ns_max_i32 s{sMk}, s{sMk}, {-ja*jd}\ns_min_i32 s{sMk}, s{sMk}, {jmax}\ns_max_i32 s{sEnd}, s{sMk}, 0\ns_add_i32 s{sT0}, s{sT0}, s{sEnd}\ns_min_i32 s{sT0}, s{sT0}, 24")
    if jn:
        assert len(LV) == 5
        e(f"s_cmp_le_i32 s{sT2}, {max(2*jnr-7, 8//fg - 8)}\ns_cselect_b32 s{sEnd}, {jn}, 0\ns_cmp_gt_i32 s{sT2}, 0\ns_cselect_b32 s{sEnd}, {-jnb}, s{sEnd}")
        e(f"s_add_i32 s84, s84, s{sEnd}\ns_max_i32 s84, s84, {-jn*jnd}\ns_min_i32 s84, s84, 8")
        if rr: e(f"s_mov_b32 s95, s{sT0}\ns_cmp_le_i32 s{sT2}, {rre}\ns_cselect_b32 s91, 1, 0\nL_h_mask:\ns_mov_b32 s{sT0}, s95")
        e(f"s_max_i32 s{sEnd}, s84, 0\ns_sub_i32 s{sT0}, s{sT0}, s{sEnd}\n" + (f"s_sub_i32 s88, s88, s89\ns_sub_i32 s88, {8 - pbk}, s88\ns_max_i32 s88, s88, 0\ns_mul_i32 s88, s88, {pb}\ns_sub_i32 s{sT0}, s{sT0}, s88\n" if pb else "") + f"s_add_i32 s{sT0}, s{sT0}, 8\ns_min_i32 s{sT0}, s{sT0}, 31\ns_max_i32 s{sT0}, s{sT0}, 0")
    e(f"s_and_b32 s{sT2}, s{sT0}, 7\ns_lshl_b32 s{sT2}, s{sT2}, 3\ns_lshr_b64 s[30:31], s[{sNx}:{sNx+1}], s{sT2}\ns_and_b32 s30, s30, 0xff\ns_add_u32 s30, s30, 1")
    e(f"s_andn2_b32 s{sT0}, s{sT0}, 7\ns_lshl_b32 s{sT2}, s30, s{sT0}\ns_sub_u32 s{sT2}, s{sT2}, 1")
    e(f"v_mov_b32 v{vT}, s{sT2}\nds_write_b32 v{vZ}, v{vT} offset:{L_FLAG}\ns_waitcnt lgkmcnt(0)")
    if sched: e("L_h_noctl:")
    if pprio is not None: e(f"s_setprio {pprio}")
    if "P" in abl: e(f"s_cmp_lt_u32 s{sRed}, 4\ns_cselect_b32 s{sWS+2}, 0, 0x400000")
    e(f"s_cmp_lt_u32 s{sRed}, 4\ns_cbranch_scc1 L_proj\ns_branch L_h_nop")
    e(f"L_h_projret:\nv_add_u32 v{vWa}, 256, v{vWa}")
    if sm: e(f"v_add_u32 v{vWb}, 256, v{vWb}")
    if defer or batchB:
        for k in range(3 * PN): e(f"v_mov_b32 v{vR+k}, v{vR+k+PN}")
        for k in range(PN): e(f"v_mov_b32 v{vR+3*PN+k}, v{vS+k}")
        if batchB:
            e(f"s_cmp_lg_u32 s{sRed}, 3\ns_cbranch_scc1 L_h_nop"); putB()
    elif swp: e(f"s_cmp_eq_u32 s{sRed}, 1\ns_cselect_b32 s{sT0}, 0x80, 0\nv_xor_b32 v{vSt}, 0x10200, v{vSt}\nv_xor_b32 v{vSt}, s{sT0}, v{vSt}")
    else: e(f"v_add_u32 v{vSt}, {512 >> hs}, v{vSt}")
    e("L_h_nop:")
    if pprio is not None: e(f"s_setprio {hprio}")
    CHK = f"L_h_chk:\ns_waitcnt vmcnt(0)\nv_cmp_ne_u32 vcc, 8, v{vRm}\ns_cbranch_vccz L_h_chkok\nbuffer_load_dword v{vRm}, v{vRow}, s[{sWS}:{sWS+3}], 0 offen sc1\ns_branch L_h_chk\nL_h_chkok:"
    if ck3:
        assert hlp and sched[3] == "0" and D1 > 3
        e(f"s_cmp_lg_u32 s{sIt}, 3\ns_cbranch_scc1 L_h_chkok\n" + CHK)
        e(f"s_cmp_lg_u32 s{sIt}, {PB+4}\ns_cbranch_scc1 L_h_n2\ns_waitcnt vmcnt(0)")
    else:
        e(f"s_cmp_lg_u32 s{sIt}, {PB-1}\ns_cbranch_scc1 L_h_n1")
        e(f"buffer_load_dword v{vRm}, v{vRow}, s[{sWS}:{sWS+3}], 0 offen sc1\nL_h_n1:")
        e(f"s_cmp_lg_u32 s{sIt}, {PB+4}\ns_cbranch_scc1 L_h_n2")
        e(CHK)
    assert bflag and lateP
    if defer: calcml(vR+32)
    else: pubml()
    e("L_h_n2:")
    if hlp:
        e(f"v_cmp_ne_u32 vcc, v{vNew}, v{vOld}\nv_mov_b32 v{vOld}, v{vNew}\ns_mov_b32 s30, vcc_lo\ns_mov_b32 exec_hi, 0")
        e(f"L_h_srv:\ns_ff1_i32_b32 s31, s30\ns_cmp_lt_i32 s31, 0\ns_cbranch_scc1 L_h_srvend\ns_bitset0_b32 s30, s31\nv_readlane_b32 s{sT2}, v{vOld}, s31")
        e(f"s_cmp_lt_u32 s31, 16\ns_cselect_b32 s{sD}, s6, s8\ns_cselect_b32 s{sD+1}, s7, s9\ns_cselect_b32 s{sT0}, 8, 24")
        e(f"s_lshr_b32 s{sT1}, s2, 4\ns_add_u32 s{sT0}, s{sT0}, s{sT1}\ns_and_b32 s{sT1}, s{sT2}, 255\ns_cmp_le_u32 s{sT0}, s{sT1}\ns_cbranch_scc1 L_h_srv")
        e(f"s_bfe_u32 s{sT2}, s{sT2}, 0x80008")
        if foreign:
            lo_, p = (0, 16) if "k" in fwhich else (16, 18)
            if "k" in fwhich or "v" in fwhich:
                e(f"s_sub_u32 s{sT0}, s31, {lo_}\ns_cmp_lt_u32 s{sT0}, 16\ns_cselect_b32 s{sT0}, s{sT2}, 255\ns_cmp_lt_u32 s{sT0}, {2*foreign}\ns_cselect_b32 s{sD}, s{p}, s{sD}\ns_cselect_b32 s{sD+1}, s{p+1}, s{sD+1}")
        if hpat: e(f"s_lshl_b32 s{sT0}, s{sT2}, 20")
        else: e(f"s_lshl_b32 s{sT2}, s{sT2}, 20\ns_lshl_b32 s{sT0}, s2, 12\ns_add_u32 s{sT0}, s{sT0}, s{sT2}")
        e(f"buffer_load_dword v{vNmc}, v{vLn}, s[{sD}:{sD+3}], s{sT0} offen\ns_branch L_h_srv\nL_h_srvend:\ns_mov_b64 exec, -1")
        if not pk2:
            e(f"s_cmp_lt_i32 s{sRk}, {8 - 8//fg}\ns_cbranch_scc1 L_h_nopk\ns_cmp_ge_u32 s{sIt}, 35\ns_cbranch_scc1 L_h_nopk")
            if pkj is not None: e(f"s_cmp_lt_i32 s{sMk}, {pkj}\ns_cbranch_scc1 L_h_nopk")
            cp_addr(pd, sT1, sPkB)
            e(f"s_load_dword s{sPk}, s[28:29], s{sT1} glc\nL_h_nopk:")
    if helpat:
        p = 16 if "k" in fwhich else 18
        e(f"s_cmp_lg_u32 s{sIt}, {helpat}\ns_cbranch_scc1 L_h_n5")
        e(f"s_mov_b32 s{sD}, s{p}\ns_mov_b32 s{sD+1}, s{p+1}\nv_lshlrev_b32 v{vT2}, {hstride}, v{vLane}\ns_lshl_b32 s{sT0}, s2, 12")
        if hstride == 7: e("s_mov_b32 exec_hi, 0")
        for r in range(2 * foreign):
            e(f"buffer_load_dword v{vML}, v{vT2}, s[{sD}:{sD+3}], s{sT0} offen\ns_add_u32 s{sT0}, s{sT0}, 0x100000")
        e("s_mov_b64 exec, -1\nL_h_n5:")
    if warm:
        e(f"s_cmp_lg_u32 s{sIt}, {warm}\ns_cbranch_scc1 L_h_n3")
        e(f"s_getpc_b64 s[30:31]\nL_pc:\ns_sub_u32 s30, s30, L_pc-L_vloop\ns_subb_u32 s31, s31, 0\nv_lshlrev_b32 v{vT2}, 7, v{vLane}\nglobal_load_dword v{vRm}, v{vT2}, s[30:31]\nL_h_n3:")
    if rew:
        e(f"s_xor_b32 s{sT0}, s{sIt}, s{sNOff}\ns_and_b32 s{sT0}, s{sT0}, {rew - 1}\ns_cbranch_scc1 L_h_norew")
        e(f"s_getpc_b64 s[30:31]\nL_pc2:\ns_sub_u32 s30, s30, L_pc2-L_k2v\ns_subb_u32 s31, s31, 0\nv_lshlrev_b32 v{vT2}, 7, v{vLane}\nglobal_load_dword v{vNmc}, v{vT2}, s[30:31]")
        e(f"v_add_u32 v{vT2}, 8192, v{vT2}\nv_min_u32 v{vT2}, L_end-L_k2v, v{vT2}\nglobal_load_dword v{vNmc}, v{vT2}, s[30:31]\nL_h_norew:")
    if sched: e(f"s_bitcmp1_b64 s[86:87], s{sIt}\ns_addc_u32 s65, s65, 0")
    e(f"s_add_u32 s{sIt}, s{sIt}, 1\ns_cmp_lt_u32 s{sIt}, {lastfb}\ns_cbranch_scc1 L_h_loop")
    if hml:
        assert rmap == 1
        e(f"s_and_b32 s{sRed}, s2, 1\ns_bfe_u32 s{sT2}, s2, 0x20001\ns_lshl2_add_u32 s{sRed}, s{sRed}, s{sT2}\ns_mul_i32 s{sRed}, s{sRed}, {ROW*64}\ns_add_u32 s{sRed}, s{sRed}, {WS_P}")
        e(f"v_mul_u32_u24 v{vRow}, {ROW}, v{vLane}\ns_mov_b32 s{sCs}, {f32(C_SCALE)}")
    nb_ = 2 * (40 - lastfb)
    for i in range(nb_):
        e("s_barrier")
        if defer == nb_ - i + 1: putB()
    if defer >= 2:
        e("s_waitcnt vmcnt(0)"); putml(vR+32)
    e(f"s_sub_u32 s{sRow}, s{sRow}, {256*ROW}")
    e("s_barrier")
    pubml()
    if defer == 1:
        e(f"s_add_u32 s{sRow}, s{sRow}, {256*ROW}"); putB()
    e("s_barrier")
    if defer == 1:
        e("s_waitcnt vmcnt(0)"); putml(vR+32)
    if hml:
        e(f"buffer_load_dwordx2 {vr(vML, 2)}, v{vRow}, s[{sWS}:{sWS+3}], s{sRed} offen offset:{PLEN} sc1\ns_waitcnt vmcnt(0)")
        mlpoll(); e("s_nop 0"); weights()
        e(f"ds_write_b32 v{vA8}, v{vP0} offset:{L_WT}\ns_waitcnt lgkmcnt(0)\ns_barrier")
    if hst: e("s_branch L_wst")
    e("L_end:\ns_endpgm")
    e(f""".section .rodata,"a"
.p2align 6
.amdhsa_kernel {KN}
  .amdhsa_next_free_vgpr {NV}
  .amdhsa_next_free_sgpr {100 if cyc else 96}
  .amdhsa_accum_offset {NV}
  .amdhsa_group_segment_fixed_size 0
  .amdhsa_kernarg_size 104
  .amdhsa_user_sgpr_count 2
  .amdhsa_user_sgpr_kernarg_segment_ptr 1
  .amdhsa_system_sgpr_workgroup_id_x 1
.end_amdhsa_kernel""")
    txt = "\n".join(x for x in a if x is not None) + "\n"
    if "w" in abl: txt = "\n".join(l for l in txt.split("\n") if not l.endswith(" lds"))
    return txt
if __name__ == "__main__":
    build("k7", gen(stamps=0))
```
